```python
import torch

def _softmax(x, axis=-1):
    return torch.softmax(x, dim=axis)
def _gelu(x):
    return torch.nn.functional.gelu(x, approximate="tanh")
def _silu(x):
    return torch.nn.functional.silu(x)
def _sigmoid(x):
    return torch.sigmoid(x)
def _layernorm(x, axis=-1, eps=1e-5):
    m = x.mean(dim=axis, keepdim=True)
    v = x.var(dim=axis, keepdim=True, unbiased=False)
    return (x - m) / torch.sqrt(v + eps)
def _scatter_add(tgt, idx, src, axis=0):
    return tgt.clone().index_add_(axis, idx, src)
def _segment_sum(src, seg, n):
    out = torch.zeros((n,) + src.shape[1:], dtype=src.dtype)
    return out.index_add_(0, seg, src)
def _pad(x, pw):
    flat = tuple(v for pair in reversed(pw) for v in pair)
    return torch.nn.functional.pad(x, flat)

kernel_name = 'concat_heads__linear_kernel_hedgehog__ssm_conv_s4d__prompt'

def setup_inputs():

    _w = (lambda a: (lambda t: t.to(torch.bfloat16) if t.is_floating_point() else t)(torch.as_tensor(a)))
    def _A_setup():
        B, S, D, H = 1, 2048, 576, 32
        Dh = D // H
        return {
            "x": _w((lambda *s: torch.randn(*s, dtype=torch.bfloat16) * 0.4)(B, S, D)),
            "wqkv": _w((lambda *s: torch.randn(*s, dtype=torch.bfloat16) * 0.4)(D, 3 * D)),
            "w_phi": _w((lambda *s: torch.randn(*s, dtype=torch.bfloat16) * 0.4)(H, Dh, Dh) * (Dh ** -0.5)),
            "wo": _w((lambda *s: torch.randn(*s, dtype=torch.bfloat16) * 0.05)(D, D)),
        }
    _A_in = _A_setup()

    def _B_setup():
        Bsz, L, D, N = 1, 2048, 576, 128
        return {
            "u": _w((lambda *s: torch.randn(*s, dtype=torch.bfloat16) * 0.05)(Bsz, L, D)),
            "log_A_real": _w((lambda *s: torch.randn(*s, dtype=torch.bfloat16) * 3.2)(D, N) * 0.5),
            "A_imag": _w((lambda *s: torch.randn(*s, dtype=torch.bfloat16) * 0.2)(D, N) * 3.14),
            "C_real": _w((lambda *s: torch.randn(*s, dtype=torch.bfloat16) * 3.2)(D, N) / N ** 0.5),
            "C_imag": _w((lambda *s: torch.randn(*s, dtype=torch.bfloat16) * 3.2)(D, N) / N ** 0.5),
            "log_dt": _w((lambda *s: torch.randn(*s, dtype=torch.bfloat16) * 0.2)(D) * 0.5 - 4.0),
            "D_skip": _w((lambda *s: torch.randn(*s, dtype=torch.bfloat16) * 0.4)(D)),
        }
    _B_in = _B_setup()

    return {
        "A_x": _A_in["x"],
        "A_wqkv": _A_in["wqkv"],
        "A_w_phi": _A_in["w_phi"],
        "A_wo": _A_in["wo"],
        "B_u": _B_in["u"],
        "B_log_A_real": _B_in["log_A_real"],
        "B_A_imag": _B_in["A_imag"],
        "B_C_real": _B_in["C_real"],
        "B_C_imag": _B_in["C_imag"],
        "B_log_dt": _B_in["log_dt"],
        "B_D_skip": _B_in["D_skip"],
    }

def reference(A_x, A_wqkv, A_w_phi, A_wo, B_u, B_log_A_real, B_A_imag, B_C_real, B_C_imag, B_log_dt, B_D_skip):
    def _A_ref(x, wqkv, w_phi, wo):
        B, S, D = x.shape
        H = 32; Dh = D // H
        qkv = (lambda x, *d: x.permute(*d))((x @ wqkv).reshape(B, S, 3, H, Dh), 2, 0, 3, 1, 4)
        q, k, v = qkv[0], qkv[1], qkv[2]
        pq = torch.einsum("bhsd,hdf->bhsf", q, w_phi)
        pk = torch.einsum("bhsd,hdf->bhsf", k, w_phi)
        phi_q = torch.concatenate([_softmax(pq, axis=-1), _softmax(-pq, axis=-1)], axis=-1)
        phi_k = torch.concatenate([_softmax(pk, axis=-1), _softmax(-pk, axis=-1)], axis=-1)
        kv = torch.einsum("bhsf,bhsd->bhfd", phi_k, v)
        z  = torch.einsum("bhsf->bhf", phi_k)
        num = torch.einsum("bhqf,bhfd->bhqd", phi_q, kv)
        den = torch.einsum("bhqf,bhf->bhq", phi_q, z)[..., None] + 1e-6
        o = num / den
        return (lambda x, *d: x.permute(*d))(o, 0, 2, 1, 3).reshape(B, S, D) @ wo

    def _B_ref(u, log_A_real, A_imag, C_real, C_imag, log_dt, D_skip):
        L = u.shape[1]
        dt = torch.exp(log_dt)
        A = -torch.exp(log_A_real) + 1j * A_imag
        C = (C_real + 1j * C_imag) * dt[:, None]
        pos = (lambda x, dt: x.to(dt))(torch.arange(L), log_dt.dtype)
        P = torch.exp((A * dt[:, None])[:, :, None] * pos[None, None, :])
        K = 2.0 * torch.einsum("dn,dnl->dl", C, P).real
        L2 = 2 * L
        u_t = (lambda x, *d: x.permute(*d))(u, 0, 2, 1)
        Kf = (lambda x, *a, **k: torch.fft.rfft(x.float(), *a, **k))(K, L2)
        Uf = (lambda x, *a, **k: torch.fft.rfft(x.float(), *a, **k))(u_t, L2)
        y = (lambda x, *a, **k: torch.fft.irfft(x, *a, **k).to(torch.bfloat16))(Uf * Kf[None, :, :], L2)[:, :, :L]
        y = (lambda x, *d: x.permute(*d))(y, 0, 2, 1)
        return y + u * D_skip[None, None, :]

    a = _A_ref(A_x, A_wqkv, A_w_phi, A_wo)
    b = _B_ref(B_u, B_log_A_real, B_A_imag, B_C_real, B_C_imag, B_log_dt, B_D_skip)
    return torch.concatenate([a, b], axis=-1)
```

```python
import re

def regs_of(tok):
    tok = tok.strip()
    m = re.fullmatch(r"([vsa])(\d+)", tok)
    if m: return m.group(1), {int(m.group(2))}
    m = re.fullmatch(r"([vsa])\[(\d+):(\d+)\]", tok)
    if m: return m.group(1), set(range(int(m.group(2)), int(m.group(3)) + 1))
    if tok == "vcc": return "s", {"vcc_lo", "vcc_hi"}
    if tok in ("vcc_lo", "vcc_hi"): return "s", {tok}
    if tok == "m0": return "s", {"m0"}
    if tok == "exec": return "s", {"exec_lo", "exec_hi"}
    if tok in ("exec_lo", "exec_hi"): return "s", {tok}
    return None, set()

TRANS = ("v_exp_f32", "v_log_f32", "v_rcp_f32", "v_rsq_f32", "v_sqrt_f32", "v_sin_f32", "v_cos_f32")

class Ins:
    __slots__ = ("text", "op", "kind", "vw", "vr", "sw", "sr", "passes", "cvr", "dpp", "perm", "lds_dma", "wide_store", "trans", "rfl")
    def __init__(self, text):
        self.text = text
        t = text.split(";")[0].strip()
        self.vw = set(); self.vr = set(); self.sw = set(); self.sr = set(); self.cvr = set()
        self.passes = 0; self.dpp = False; self.perm = False; self.lds_dma = False; self.wide_store = False
        self.trans = False; self.rfl = False
        if not t or t.endswith(":") or t.startswith("."):
            self.op = ""; self.kind = "label" if t.endswith(":") else "none"; return
        parts = t.split(None, 1)
        self.op = op = parts[0]
        rest = parts[1] if len(parts) > 1 else ""
        toks = [x.strip() for x in rest.split(",")] if rest else []
        ops = []
        for x in toks:
            ops.append(x.split()[0] if x.split() else x)
        mods = rest
        def add(tok, write):
            tok = tok.lstrip("-").strip("|")
            k, r = regs_of(tok)
            if k in ("v", "a"):
                rr = {(k, i) for i in r}
                (self.vw if write else self.vr).update(rr)
            elif k == "s":
                (self.sw if write else self.sr).update(r)
        if op.startswith("v_mfma"):
            self.kind = "mfma"
            self.passes = 8 if "32x32" in op else 4
            add(ops[0], True); add(ops[1], False); add(ops[2], False)
            k, r = regs_of(ops[3])
            if k in ("v", "a"): self.cvr = {(k, i) for i in r}
        elif op.startswith("v_"):
            self.kind = "valu"
            self.trans = any(op.startswith(x) for x in TRANS)
            self.dpp = ("row_" in mods) or ("quad_perm" in mods) or ("wave_" in mods)
            base = op.replace("_e32", "").replace("_e64", "").replace("_dpp", "")
            if base.startswith("v_permlane") and "swap" in base:
                self.perm = True
                for o in ops[:2]:
                    add(o, True); add(o, False)
            elif base.startswith("v_readfirstlane") or base.startswith("v_readlane"):
                self.rfl = True
                add(ops[0], True)
                for o in ops[1:]: add(o, False)
            elif base.startswith("v_cmpx"):
                self.sw.update({"exec_lo", "exec_hi"})
                for o in ops[1:]: add(o, False)
            else:
                add(ops[0], True)
                n = 1
                if base in ("v_add_co_u32", "v_sub_co_u32", "v_addc_co_u32", "v_subb_co_u32"):
                    add(ops[1], True); n = 2
                for o in ops[n:]: add(o, False)
                if base.startswith("v_cndmask") and len(ops) == 3:
                    self.sr.update({"vcc_lo", "vcc_hi"})
                if base in ("v_fmac_f32", "v_mac_f32", "v_pk_fmac_f16", "v_dot2c_f32_bf16", "v_writelane_b32"):
                    add(ops[0], False)
        elif op.startswith("buffer_") or op.startswith("global_"):
            self.kind = "vmem"
            mo = re.search(r"offset:(\d+)", mods)
            assert not mo or int(mo.group(1)) < 4096, text
            lds = re.search(r"\blds\b", mods) is not None
            if op.startswith("buffer_load"):
                if lds:
                    self.lds_dma = True
                    self.sr.add("m0")
                    for o in ops: add(o, False)
                else:
                    add(ops[0], True)
                    for o in ops[1:]: add(o, False)
            elif op.startswith("buffer_store"):
                for o in ops: add(o, False)
                self.wide_store = ("x3" in op) or ("x4" in op)
                k, r = regs_of(ops[0])
                self.cvr = {(k, i) for i in r}
            elif op.startswith("buffer_atomic"):
                for o in ops: add(o, False)
                if " sc0" in mods: add(ops[0], True)
            else:
                raise ValueError("unhandled vmem " + text)
        elif op.startswith("ds_"):
            self.kind = "ds"
            mo = re.search(r"offset:(\d+)", mods)
            assert not mo or int(mo.group(1)) < 65536, text
            if op.startswith("ds_read") or op.startswith("ds_bpermute") or op.startswith("ds_permute") or "_rtn" in op or op.startswith("ds_swizzle"):
                add(ops[0], True)
                for o in ops[1:]: add(o, False)
            else:
                for o in ops: add(o, False)
        elif op.startswith("s_"):
            self.kind = "salu"
            if op in ("s_nop", "s_waitcnt", "s_barrier", "s_endpgm", "s_sleep", "s_setprio", "s_branch") or op.startswith("s_cbranch"):
                pass
            elif op.startswith("s_cmp") or op.startswith("s_bitcmp"):
                for o in ops: add(o, False)
            elif op.startswith("s_load") or op.startswith("s_memtime") or op.startswith("s_memrealtime") or op.startswith("s_getreg"):
                add(ops[0], True)
                for o in ops[1:]: add(o, False)
            else:
                add(ops[0], True)
                for o in ops[1:]: add(o, False)
                if "saveexec" in op:
                    self.sw.update({"exec_lo", "exec_hi"})
        else:
            raise ValueError("unknown instruction " + text)

def states(ins):
    if ins.kind in ("label", "none"): return 0
    if ins.op == "s_nop":
        return int(ins.text.split()[1], 0) + 1
    return 1

def need(p, c):
    n = 0
    if p.kind == "mfma":
        w = p.vw
        big = 8 if p.passes == 4 else 12
        if c.kind == "mfma":
            if w & c.vr: n = max(n, big)
            if w & c.cvr:
                if not (c.cvr == w and c.passes == p.passes): n = max(n, 6 if p.passes == 4 else 10)
            if w & c.vw and not (c.cvr == w):
                n = max(n, 6 if p.passes == 4 else 10)
        elif c.kind in ("valu", "vmem", "ds"):
            if w & (c.vr | c.vw): n = max(n, big)
        if c.kind == "valu" and (p.cvr & c.vw): n = max(n, 3 if p.passes == 4 else 7)
    elif p.kind == "valu":
        if c.kind == "mfma":
            if p.vw & (c.vr | c.cvr): n = max(n, 2)
            if p.sw & {"exec_lo", "exec_hi"}: n = max(n, 4)
        if c.kind == "vmem" and (p.sw & c.sr): n = max(n, 5)
        if c.kind == "valu":
            if p.sw & c.sr: n = max(n, 4 if (c.rfl or c.perm) else 2)
            if p.vw & c.vr:
                if c.rfl: n = max(n, 1)
                if c.dpp or c.perm: n = max(n, 2)
                if p.trans and not c.trans: n = max(n, 1)
                if ("op_sel" in p.text and not p.op.startswith("v_pk_")) or "sdwa" in p.text.lower(): n = max(n, 1)
            if (p.sw & {"exec_lo", "exec_hi"}) and c.dpp: n = max(n, 5)
    elif p.kind == "vmem":
        if p.wide_store and (p.cvr & c.vw): n = max(n, 2 if c.kind == "valu" else 1)
    elif p.kind == "salu":
        if "m0" in p.sw and c.lds_dma: n = max(n, 1)
    return n

MAXLOOK = 14

def pad(lines):
    out = []
    hist = []
    for text in lines:
        for one in text.split("\n"):
            ins = Ins(one)
            if ins.kind in ("label", "none"):
                out.append(one); continue
            req = 0; dist = 0
            for p in reversed(hist):
                if dist >= MAXLOOK: break
                r = need(p, ins) - dist
                if r > req: req = r
                dist += states(p)
            while req > 0:
                k = min(req, 16)
                nop = Ins("s_nop %d" % (k - 1))
                out.append(nop.text); hist.append(nop); req -= k
            out.append(one); hist.append(ins)
            if len(hist) > 40: hist = hist[-40:]
    return out

class Asm:
    def __init__(self):
        self.lines = []
        self.uid = 0
    def __call__(self, s, *args):
        if args: s = s % args
        for l in s.strip("\n").split("\n"):
            l = l.strip()
            if l: self.lines.append(l)
    def label(self, base="L"):
        Asm._uid = getattr(Asm, "_uid", 0) + 1
        return "%s_%d" % (base, Asm._uid)
    def extend(self, other):
        self.lines.extend(other.lines)

def vr(b, n=1):
    return "v%d" % b if n == 1 else "v[%d:%d]" % (b, b + n - 1)
def sr(b, n=1):
    return "s%d" % b if n == 1 else "s[%d:%d]" % (b, b + n - 1)

def weave(main, side, ratio=None):
    out = []
    nm, ns = len(main), len(side)
    j = 0
    for i, m in enumerate(main):
        out.append(m)
        tgt = (i + 1) * ns // max(nm, 1)
        while j < tgt:
            out.append(side[j]); j += 1
    out.extend(side[j:])
    return out
```

```python
import sys, struct
from gen_core import *

NAME = "concat_heads__linear_kernel_hedgehog__ssm_conv_s4d__prompt"
OPT = dict(A=1, B=1, dbg=0, stamps=0)
for x in sys.argv[2:]:
    k, v = x.split("=")
    OPT[k] = int(v, 0)

def f2u(x): return struct.unpack("<I", struct.pack("<f", x))[0]

L_CTRL = 0
C_WREADY, C_APROG, C_TB, C_WOREADY, C_PHI = 0, 16, 32, 48, 64
NS = 14
L_WRING = 256
L_XRING = L_WRING + NS * 3072
L_WO = 256
L_OVL = L_XRING + 4 * 12288
L_PHIRAW = L_OVL + 6144
L_B = L_PHIRAW + 1536
B_REGION = 21248
LDS_TOTAL = L_B + 3 * B_REGION
assert LDS_TOTAL == 163840

WS_KV, WS_KV9, WS_O, WS_O9 = 0x0, 0x100000, 0x200000, 0x400000
WS_FKV, WS_FO, WS_FU, WS_FY = 0x480000, 0x481000, 0x482000, 0x483000
WS_UT, WS_YT = 0x500000, 0x780000
WS_DBG = 0xA00000
WS_STAMP = 0x900000
WS_SIZE = 0x2000000
OOB = 0x40000000

S_WG, S_W, S_TT, S_HP = 2, 3, 4, 5
R_X, R_WQ, R_WS, R_OUT, R_R4, R_R5 = 8, 12, 16, 20, 24, 28
P_X, P_WQKV, P_PHI, P_WO, P_U, P_LOGA, P_AIM, P_CRE, P_CIM, P_LDT, P_D, P_OUT, P_DBG, P_WS = [36 + 2 * i for i in range(14)]
S_SPIN, S_RDY, S_NONCE = 64, 65, 66
S_T0 = 68
S_C0 = 80

def srd(a, r, p, nbytes):
    a("s_mov_b32 s%d, s%d", r, p)
    a("s_mov_b32 s%d, s%d", r + 1, p + 1)
    a("s_mov_b32 s%d, 0x%x", r + 2, nbytes)
    a("s_mov_b32 s%d, 0x20000", r + 3)

class LQ:
    def __init__(self, a): self.a = a; self.q = []
    def issue(self, tag): self.q.append(tag)
    def wait(self, tag):
        idx = [i for i, t in enumerate(self.q) if t == tag]
        if not idx: return
        n = len(self.q) - 1 - idx[-1]
        assert n <= 15, n
        self.a("s_waitcnt lgkmcnt(%d)", n)
        self.q = self.q[idx[-1] + 1:]
    def drain(self):
        self.a("s_waitcnt lgkmcnt(0)"); self.q = []
    def known_empty(self): self.q = []

def spin_loop(a, lab_loop, by=1):
    a("s_sub_u32 s%d, s%d, %d", S_SPIN, S_SPIN, by)
    a("s_cbranch_scc0 %s", lab_loop)
    a("s_mov_b32 s%d, 0", S_SPIN)

def lds_wait_ge(a, off, cached, value, vt, vz):
    ok = a.label("ok"); lp = a.label("poll")
    a("s_cmp_ge_u32 s%d, %d", cached, value)
    a("s_cbranch_scc1 %s", ok)
    a(lp + ":")
    a("ds_read_b32 v%d, v%d offset:%d", vt, vz, off)
    a("s_waitcnt lgkmcnt(0)")
    a("v_readfirstlane_b32 s%d, v%d", cached, vt)
    a("s_cmp_ge_u32 s%d, %d", cached, value)
    a("s_cbranch_scc1 %s", ok)
    spin_loop(a, lp)
    a(ok + ":")

def lds_wait_min4_ge(a, off, cached, value, vt, vz):
    ok = a.label("ok"); lp = a.label("poll")
    a("s_cmp_ge_u32 s%d, %d", cached, value)
    a("s_cbranch_scc1 %s", ok)
    a(lp + ":")
    a("ds_read_b128 v[%d:%d], v%d offset:%d", vt, vt + 3, vz, off)
    a("s_waitcnt lgkmcnt(0)")
    a("v_min_u32 v%d, v%d, v%d", vt, vt, vt + 1)
    a("v_min3_u32 v%d, v%d, v%d, v%d", vt, vt, vt + 2, vt + 3)
    a("v_readfirstlane_b32 s%d, v%d", cached, vt)
    a("s_cmp_ge_u32 s%d, %d", cached, value)
    a("s_cbranch_scc1 %s", ok)
    spin_loop(a, lp)
    a(ok + ":")

def team_barrier(a, epoch, vt, vz, vw4):
    a("s_waitcnt lgkmcnt(0)")
    a("v_mov_b32 v%d, %d", vt, epoch)
    a("ds_write_b32 v%d, v%d offset:%d", vw4, vt, C_TB)
    a("s_mov_b32 s%d, 0", S_T0)
    lds_wait_min4_ge(a, C_TB, S_T0, epoch, vt, vz)

def get_nonce(a, vt, vz, rdbg):
    ok = a.label("ok"); lp = a.label("poll")
    a(lp + ":")
    a("buffer_load_dword v%d, v%d, s[%d:%d], 0 offen sc1", vt, vz, rdbg, rdbg + 3)
    a("s_waitcnt vmcnt(0)")
    a("v_readfirstlane_b32 s%d, v%d", S_NONCE, vt)
    a("s_cmp_lg_u32 s%d, 0", S_NONCE)
    a("s_cbranch_scc1 %s", ok)
    a("s_sleep 1")
    spin_loop(a, lp, 64)
    a(ok + ":")

def poll_flags(a, vaddr, vt, nlanes):
    ok = a.label("ok"); lp = a.label("poll")
    a("s_mov_b64 s[%d:%d], exec", S_T0 + 2, S_T0 + 3)
    if nlanes < 64:
        a("s_mov_b64 exec, 0x%x", (1 << nlanes) - 1) if nlanes <= 31 else None
        if nlanes > 31:
            a("s_bfm_b64 exec, %d, 0", nlanes)
    a(lp + ":")
    a("buffer_load_dword v%d, v%d, s[%d:%d], 0 offen sc1", vt, vaddr, R_WS, R_WS + 3)
    a("s_waitcnt vmcnt(0)")
    a("v_cmp_ne_u32 vcc, s%d, v%d", S_NONCE, vt)
    a("s_cmp_eq_u64 vcc, 0")
    a("s_cbranch_scc1 %s", ok)
    a("s_sleep 1")
    spin_loop(a, lp, 64)
    a(ok + ":")
    a("s_mov_b64 exec, s[%d:%d]", S_T0 + 2, S_T0 + 3)

def publish_flag(a, vaddr, vt):
    a("s_waitcnt vmcnt(0)")
    a("v_mov_b32 v%d, s%d", vt, S_NONCE)
    a("s_mov_b64 exec, 1")
    a("buffer_store_dword v%d, v%d, s[%d:%d], 0 offen sc1", vt, vaddr, R_WS, R_WS + 3)
    a("s_mov_b64 exec, -1")

STAMP0 = 36
STAMP_NAMES = {}
def stamp(a, idx, name, lq=None, real=False):
    if not OPT["stamps"]: return
    STAMP_NAMES[idx] = name
    a("s_memrealtime s[100:101]" if real else "s_memtime s[100:101]")
    a("s_waitcnt lgkmcnt(0)")
    a("s_mov_b32 s%d, s100", STAMP0 + idx)
    if lq is not None: lq.known_empty()

def stamp_dump(a, n=28):
    if not OPT["stamps"]: return
    a("v_mov_b32 v10, 0")
    for i in range(n):
        a("v_writelane_b32 v10, s%d, %d", STAMP0 + i, i)
    a("s_lshl_b32 s%d, s%d, 3", S_T0 + 6, S_WG)
    a("s_add_u32 s%d, s%d, s%d", S_T0 + 6, S_T0 + 6, S_W)
    a("s_lshl_b32 s%d, s%d, 8", S_T0 + 6, S_T0 + 6)
    a("s_add_u32 s%d, s%d, 0x%x", S_T0 + 6, S_T0 + 6, WS_STAMP)
    a("v_mbcnt_lo_u32_b32 v11, -1, 0")
    a("v_mbcnt_hi_u32_b32 v11, -1, v11")
    a("v_lshlrev_b32 v11, 2, v11")
    a("buffer_store_dword v10, v11, s[%d:%d], s%d offen", R_WS, R_WS + 3, S_T0 + 6)
    a("s_waitcnt vmcnt(0)")

MF = "v_mfma_f32_16x16x32_bf16"
def mfma(a, d, x, y, c):
    cs = "0" if c is None else vr(c, 4)
    a("%s %s, %s, %s, %s", MF, vr(d, 4), vr(x, 4), vr(y, 4), cs)

X0 = 112
def XR(t, s): return X0 + 8 * s + 4 * t
WF0 = 88
def WF(b, tau): return WF0 + 12 * b + 4 * tau
ACC0 = 64
def ACC(tau, t): return ACC0 + 8 * tau + 4 * t
KP0 = 52
SEL = 44
PHT0 = 20
V_Z = SEL + 1
V_L, V_I, V_G = 0, 1, 2
V_W4 = 3
V_WA, V_WB = 4, 5
V_T = 6

def a_setup(a):
    a("v_and_b32 v%d, 15, v%d", V_I, V_L)
    a("v_lshrrev_b32 v%d, 4, v%d", V_G, V_L)
    a("v_mov_b32 v%d, s%d", V_W4, S_W)
    a("v_lshlrev_b32 v%d, 2, v%d", V_W4, V_W4)
    a("v_lshrrev_b32 v8, 3, v%d", V_L)
    a("v_mul_u32_u24 v8, 1152, v8")
    a("v_and_b32 v9, 7, v%d", V_L)
    a("v_xor_b32 v9, v9, v%d", V_G)
    a("v_lshlrev_b32 v9, 4, v9")
    a("v_add_u32 v6, v8, v9")
    a("v_xor_b32 v7, 64, v6")
    a("s_lshl_b32 s%d, s%d, 7", S_C0, S_TT)
    a("s_lshl_b32 s%d, s%d, 5", S_T0, S_W)
    a("s_add_u32 s%d, s%d, s%d", S_C0, S_C0, S_T0)
    a("s_mul_i32 s%d, s%d, 1152", S_C0, S_C0)
    a("s_mul_i32 s%d, s%d, 12288", S_C0 + 1, S_W)
    a("s_add_u32 s%d, s%d, %d", S_C0 + 1, S_C0 + 1, L_XRING)

def x_issue(a, c):
    slot = c % 3
    for m in range(4):
        a("s_add_u32 m0, s%d, %d", S_C0 + 1, slot * 4096 + m * 1024)
        a("s_add_u32 s%d, s%d, %d", S_T0, S_C0, c * 128 + m * 9216)
        a("buffer_load_dwordx4 v%d, s[%d:%d], s%d offen lds", 6 + (m & 1), R_X, R_X + 3, S_T0)

def a_setup2(a):
    a("v_lshrrev_b32 v10, 1, v%d", V_I)
    a("v_and_b32 v10, 7, v10")
    a("v_xor_b32 v10, v10, v%d", V_G)
    a("v_lshlrev_b32 v11, 3, v%d", V_I)
    a("v_add_u32 v10, v10, v11")
    a("v_lshlrev_b32 v10, 4, v10")
    a("v_add_u32 v8, s%d, v10", S_C0 + 1)
    a("v_xor_b32 v9, 64, v8")
    a("v_lshrrev_b32 v10, 1, v%d", V_G)
    a("v_lshlrev_b32 v10, 4, v10")
    a("v_and_b32 v11, 1, v%d", V_G)
    a("v_lshlrev_b32 v11, 2, v11")
    a("v_add_u32 v10, v10, v11")
    a("v_lshrrev_b32 v11, 2, v%d", V_I)
    a("v_add_u32 v10, v10, v11")
    a("v_mul_u32_u24 v10, 96, v10")
    a("v_add_u32 v10, %d, v10", L_WRING)
    a("v_add_u32 v%d, 32, v10", V_WB)
    a("v_and_b32 v11, 3, v%d", V_I)
    a("v_lshlrev_b32 v11, 3, v11")
    a("v_add_u32 v%d, v10, v11", V_WA)
    a("v_lshrrev_b32 v10, 2, v%d", V_I)
    a("v_cmp_eq_u32 vcc, v10, v%d", V_G)
    a("v_and_b32 v11, 3, v%d", V_I)
    a("v_and_b32 v12, 1, v11")
    a("v_lshlrev_b32 v12, 4, v12")
    a("v_mov_b32 v13, 0x3f80")
    a("v_lshlrev_b32 v13, v12, v13")
    a("v_cndmask_b32 v13, 0, v13, vcc")
    a("v_cmp_gt_u32 vcc, 2, v11")
    a("v_cndmask_b32 v%d, 0, v13, vcc", SEL + 4)
    a("v_cndmask_b32 v%d, v13, 0, vcc", SEL + 5) if False else None
    a("v_mov_b32 v14, 0")
    a("v_cndmask_b32 v%d, v13, v14, vcc", SEL + 5)
    a("v_and_b32 v%d, 0xffff, v%d", SEL + 0, SEL + 4)
    for i in (1, 2, 3, 6, 7):
        a("v_mov_b32 v%d, 0", SEL + i)

def phi_raw_issue(a):
    a("s_mul_i32 s%d, s%d, 1296", S_T0 + 1, S_HP)
    a("v_lshlrev_b32 v10, 4, v%d", V_L)
    a("s_mov_b32 m0, %d", L_PHIRAW)
    a("buffer_load_dwordx4 v10, s[%d:%d], s%d offen lds", R_R4, R_R4 + 3, S_T0 + 1)
    a("v_add_u32 v11, 1024, v10")
    a("v_mov_b32 v12, 0x%x", OOB)
    a("v_cmp_gt_u32 vcc, 17, v%d", V_L)
    a("v_cndmask_b32 v11, v12, v11, vcc")
    a("s_mov_b32 m0, %d", L_PHIRAW + 1024)
    a("s_mov_b32 exec_hi, 0")
    a("buffer_load_dwordx4 v11, s[%d:%d], s%d offen lds", R_R4, R_R4 + 3, S_T0 + 1)
    a("s_mov_b32 exec_hi, -1")

def phi_build(a, h, u):
    a("v_and_b32 v10, 3, v%d", V_I)
    a("v_add_u32 v10, %d, v10", 4 * u)
    a("v_lshrrev_b32 v11, 2, v%d", V_I)
    a("v_and_b32 v11, 1, v11")
    a("v_mul_u32_u24 v11, 9, v11")
    a("v_add_u32 v11, v11, v10")
    a("v_cmp_gt_u32 s[%d:%d], 9, v10", S_T0 + 4, S_T0 + 5)
    a("v_lshlrev_b32 v12, 2, v%d", V_G)
    a("v_add_u32 v12, %d, v12", 16 * h - 18 * h)
    for j in range(8):
        dj = j if j < 4 else 16 + (j - 4)
        a("v_add_u32 v13, %d, v12", dj)
        a("v_cmp_gt_u32 vcc, 18, v13")
        a("s_and_b64 vcc, vcc, s[%d:%d]", S_T0 + 4, S_T0 + 5)
        a("v_mul_u32_u24 v13, 18, v13")
        a("v_add_u32 v13, v13, v11")
        a("v_lshlrev_b32 v13, 1, v13")
        a("v_add_u32 v13, %d, v13", L_PHIRAW + h * 648)
        a("v_mov_b32 v14, %d", L_PHIRAW + 1400)
        a("v_cndmask_b32 v13, v14, v13, vcc")
        a("ds_read_u16 v%d, v13", 20 + j)
    a("s_waitcnt lgkmcnt(0)")
    for r in range(4):
        a("v_lshl_or_b32 v%d, v%d, 16, v%d", 16 + r, 21 + 2 * r, 20 + 2 * r)
    a("v_lshrrev_b32 v10, 3, v%d", V_I)
    a("v_mul_u32_u24 v10, 0x8000, v10")
    a("v_lshlrev_b32 v11, 16, v10")
    a("v_or_b32 v10, v10, v11")
    for r in range(4):
        a("v_xor_b32 v%d, v%d, v10", 16 + r, 16 + r)
    a("v_lshlrev_b32 v11, 4, v%d", V_L)
    a("v_add_u32 v11, %d, v11", L_OVL + (h * 3 + u) * 1024)
    a("ds_write_b128 v11, v[16:19]")

def gemm_section(a, lq, sec, pre=None, side=None):
    base = 18 * sec
    vz = V_Z
    if sec == 1:
        tiles = [(V_WA, 0), (V_WB, 0), (V_WA, 40)]
    else:
        tiles = [(V_WA, 0), (V_WA, 32), (V_WA, 64)]
    def reads(s):
        g = base + s
        off = (g % NS) * 3072
        for tau, (va, o) in enumerate(tiles):
            r = WF(g & 1, tau)
            a("ds_read_b64_tr_b16 v[%d:%d], v%d offset:%d", r, r + 1, va, off + o)
            lq.issue(("w", g, tau, 0))
            a("ds_read_b64_tr_b16 v[%d:%d], v%d offset:%d", r + 2, r + 3, va, off + o + 768)
            lq.issue(("w", g, tau))
    def xchunk(c):
        later = min(8, c + 2) - c
        a("s_waitcnt vmcnt(%d)", 4 * later)
        for h in range(2):
            for t in range(2):
                a("ds_read_b128 %s, v%d offset:%d", vr(XR(t, 2 * c + h), 4), 8 + h, (c % 3) * 4096 + t * 2048)
                lq.issue(("x", c, h, t))
    if sec == 0:
        xchunk(0)
    lds_wait_ge(a, C_WREADY, S_RDY, base + 1, V_T + 10, vz)
    reads(0)
    for s in range(18):
        g = base + s
        newx = (sec == 0 and s + 1 < 18 and (s + 1) % 2 == 0)
        if s + 1 < 18:
            lds_wait_ge(a, C_WREADY, S_RDY, g + 2, V_T + 10, vz)
            if newx: xchunk((s + 1) // 2)
            reads(s + 1)
        for tau in range(3):
            lq.wait(("w", g, tau))
            if tau == 0 and sec == 0 and s % 2 == 0:
                pass
            for t in range(2):
                c = None if s == 0 else ACC(tau, t)
                if sec == 1:
                    mfma(a, ACC(tau, t), XR(t, s), WF(g & 1, tau), c)
                else:
                    mfma(a, ACC(tau, t), WF(g & 1, tau), XR(t, s), c)
            if tau == 2:
                a("v_mov_b32 v%d, %d", V_T + 10, g + 1)
                a("ds_write_b32 v%d, v%d offset:%d", V_W4, V_T + 10, C_APROG)
                lq.issue(("prog", g))
                if sec == 0 and s % 2 == 0 and s // 2 + 3 < 9:
                    x_issue(a, s // 2 + 3)

def cvt_pk(a, d, x, y):
    a("v_cvt_pk_bf16_f32 v%d, v%d, v%d", d, x, y)

def softmax_unit(a, P, out_a, out_b, tmp):
    m, t2, sc = tmp, tmp + 1, tmp + 2
    a("v_max3_f32 v%d, v%d, v%d, v%d", m, P, P + 1, P + 2)
    a("v_max3_f32 v%d, v%d, v%d, v%d", t2, P + 3, P + 4, P + 5)
    a("v_max3_f32 v%d, v%d, v%d, v%d", m, m, P + 6, P + 7)
    a("v_max3_f32 v%d, v%d, v%d, v%d", m, m, t2, P + 8)
    a("v_mov_b32 v%d, v%d", t2, m)
    a("v_permlane16_swap_b32 v%d, v%d", m, t2)
    a("v_max_f32 v%d, v%d, v%d", m, m, t2)
    a("v_mul_f32 v%d, s%d, v%d", m, S_C0 + 3, m)
    for i in range(9):
        a("v_fma_f32 v%d, v%d, s%d, v%d", P + i, P + i, S_C0 + 2, m)
    for i in range(9):
        a("v_exp_f32 v%d, v%d", P + i, P + i)
    a("v_add_f32 v%d, v%d, v%d", sc, P, P + 1)
    a("v_add_f32 v%d, v%d, v%d", t2, P + 2, P + 3)
    a("v_add_f32 v%d, v%d, v%d", sc, sc, P + 4)
    a("v_add_f32 v%d, v%d, v%d", t2, t2, P + 5)
    a("v_add_f32 v%d, v%d, v%d", sc, sc, P + 6)
    a("v_add_f32 v%d, v%d, v%d", t2, t2, P + 7)
    a("v_add_f32 v%d, v%d, v%d", sc, sc, P + 8)
    a("v_add_f32 v%d, v%d, v%d", sc, sc, t2)
    a("v_mov_b32 v%d, v%d", t2, sc)
    a("v_permlane16_swap_b32 v%d, v%d", sc, t2)
    a("v_add_f32 v%d, v%d, v%d", sc, sc, t2)
    a("v_rcp_f32 v%d, v%d", sc, sc)
    for i in range(9):
        a("v_mul_f32 v%d, v%d, v%d", P + i, P + i, sc)
    for i in range(4):
        cvt_pk(a, out_a + i, P + 2 * i, P + 2 * i + 1)
    a("v_cvt_pk_bf16_f32 v%d, v%d, 0", out_b, P + 8)

def pack_kq(a):
    for t in range(2):
        for tau in range(3):
            cvt_pk(a, KP0 + 6 * t + 2 * tau, ACC(tau, t), ACC(tau, t) + 1)
            cvt_pk(a, KP0 + 6 * t + 2 * tau + 1, ACC(tau, t) + 2, ACC(tau, t) + 3)

def phi_frags_read(a, lq, h):
    a("v_lshlrev_b32 v19, 4, v%d", V_L)
    a("v_add_u32 v19, %d, v19", L_OVL)
    for u in range(3):
        a("ds_read_b128 %s, v19 offset:%d", vr(WF(0, u), 4), (h * 3 + u) * 1024)
        lq.issue(("pf", h, u))

def feature_map(a, lq, kside):
    P = ACC0
    D = ACC0 + 12
    PA = WF(1, 0)
    PB = WF(1, 1)
    for i in (1, 2, 3):
        a("v_mov_b32 v%d, 0", PB + i)
    for h in range(2):
        phi_frags_read(a, lq, h)
        for t in range(2):
            if t == 0: lq.drain()
            for u in range(3):
                mfma(a, P + 4 * u, WF(0, u), KP0 + 6 * t + 2 * h, None)
            if kside:
                softmax_unit(a, P, PA, PB, V_T + 10)
                mfma(a, D + 0, PA, SEL + 4, None)
                mfma(a, D + 4, PA, SEL + 2, None)
                mfma(a, D + 8, PB, SEL + 0, None)
                for j in range(3):
                    r = PHT0 + (h * 3 + j) * 4 + 2 * t
                    cvt_pk(a, r, D + 4 * j, D + 4 * j + 1)
                    cvt_pk(a, r + 1, D + 4 * j + 2, D + 4 * j + 3)
            else:
                u0 = PHT0 + 6 * (h * 2 + t)
                softmax_unit(a, P, u0, u0 + 4, V_T + 10)
                a("v_mov_b32 v%d, 0", u0 + 5)

def dbg_dump(a, regs, slot, vt):
    a("s_lshl_b32 s%d, s%d, 3", S_T0 + 6, S_WG)
    a("s_add_u32 s%d, s%d, s%d", S_T0 + 6, S_T0 + 6, S_W)
    a("s_mul_i32 s%d, s%d, %d", S_T0 + 6, S_T0 + 6, 64 * 256)
    a("s_add_u32 s%d, s%d, %d", S_T0 + 6, S_T0 + 6, WS_DBG + slot * 256)
    a("v_lshlrev_b32 v%d, 2, v%d", vt, V_L)
    for i, r in enumerate(regs):
        a("s_nop 7")
        a("buffer_store_dword v%d, v%d, s[%d:%d], s%d offen", r, vt, R_WS, R_WS + 3, S_T0 + 6)
        a("s_add_u32 s%d, s%d, 256", S_T0 + 6, S_T0 + 6)
    a("s_waitcnt vmcnt(0)")

def a_wave(a):
    lq = LQ(a)
    srd(a, R_X, P_X, 2048 * 1152)
    srd(a, R_R4, P_PHI, 32 * 648)
    srd(a, R_R5, P_DBG, 256)
    stamp(a, 0, "real0", real=True); stamp(a, 1, "start")
    a_setup(a)
    phi_raw_issue(a)
    for c in range(3): x_issue(a, c)
    a_setup2(a)
    a("s_mov_b32 s%d, 0x%x", S_C0 + 2, f2u(1.4426950408889634))
    a("s_mov_b32 s%d, 0x%x", S_C0 + 3, f2u(-1.4426950408889634))
    skip = a.label("skip")
    a("s_cmp_lg_u32 s%d, 0", S_W)
    a("s_cbranch_scc1 %s", skip)
    a("v_lshlrev_b32 v10, 2, v%d", V_L)
    a("ds_write_b32 v10, v%d", V_Z)
    a(skip + ":")
    a("s_waitcnt lgkmcnt(0)")
    a("s_barrier")
    stamp(a, 2, "barrier")
    a("s_mov_b32 s%d, 0", S_RDY)
    a("s_waitcnt vmcnt(12)")
    for w in range(4):
        nxt = a.label("pb")
        a("s_cmp_lg_u32 s%d, %d", S_W, w)
        a("s_cbranch_scc1 %s", nxt)
        phi_build(a, w // 3, w % 3)
        if w < 2: phi_build(a, 1, w + 1)
        a(nxt + ":")
    a("s_waitcnt lgkmcnt(0)")
    a("v_mov_b32 v10, 1")
    a("ds_write_b32 v%d, v10 offset:%d", V_W4, C_PHI)
    lq.known_empty(); lq.issue("phiflag")
    stamp(a, 3, "phibuilt", lq)
    gemm_section(a, lq, 0)
    stamp(a, 4, "kgemm", lq)
    if OPT["dbg"] == 1: dbg_dump(a, list(range(ACC0, ACC0 + 24)), 0, 19)
    pack_kq(a)
    a("s_mov_b32 s%d, 0", S_T0 + 7)
    lds_wait_min4_ge(a, C_PHI, S_T0 + 7, 1, V_T + 10, V_Z)
    lq.drain()
    feature_map(a, lq, True)
    if OPT["dbg"] == 1: dbg_dump(a, list(range(PHT0, PHT0 + 24)), 24, 19)
    stamp(a, 5, "kfeat", lq)
    gemm_section(a, lq, 1)
    stamp(a, 6, "vgemm", lq)
    VF = KP0
    for tau in range(3):
        for t in range(2):
            cvt_pk(a, VF + 4 * tau + 2 * t, ACC(tau, t), ACC(tau, t) + 1)
            cvt_pk(a, VF + 4 * tau + 2 * t + 1, ACC(tau, t) + 2, ACC(tau, t) + 3)
    a("v_cmp_eq_u32 vcc, 4, v%d", V_I)
    a("v_mov_b32 v10, 0x3f803f80")
    for i in range(4):
        a("v_cndmask_b32 v%d, v%d, v10, vcc", VF + 4 + i, VF + 4 + i)
    a("v_lshlrev_b32 v10, 4, v%d", V_L)
    a("v_add_u32 v11, s%d, v10", S_C0 + 1)
    for i in range(6):
        a("ds_write_b128 v11, %s offset:%d", vr(PHT0 + 4 * i, 4), i * 1024)
    for i in range(3):
        a("ds_write_b128 v11, %s offset:%d", vr(VF + 4 * i, 4), (6 + i) * 1024)
    team_barrier(a, 1, V_T + 10, V_Z, V_W4)
    lq.known_empty()
    stamp(a, 7, "kvbar", lq)
    a("s_lshr_b32 s%d, s%d, 1", S_T0 + 4, S_W)
    a("s_mul_i32 s%d, s%d, 3072", S_T0 + 5, S_T0 + 4)
    a("s_lshl_b32 s%d, s%d, 11", S_T0 + 6, S_T0 + 4)
    a("s_bitcmp1_b32 s%d, 0", S_W)
    a("s_cselect_b32 s%d, 1024, s%d", S_T0 + 6, S_T0 + 6)
    a("s_add_u32 s%d, s%d, %d", S_T0 + 6, S_T0 + 6, 6144)
    a("v_add_u32 v10, %d, v10", L_XRING)
    a("v_add_u32 v11, s%d, v10", S_T0 + 5)
    a("v_add_u32 v12, s%d, v10", S_T0 + 6)
    FA = WF0
    for wp in range(4):
        b = WF0 if wp % 2 == 0 else PHT0
        for j in range(3):
            a("ds_read_b128 %s, v11 offset:%d", vr(b + 4 * j, 4), wp * 12288 + j * 1024)
            lq.issue(("kx", wp, j))
        a("ds_read_b128 %s, v12 offset:%d", vr(b + 12, 4), wp * 12288)
        lq.issue(("kx", wp))
        if wp % 2 == 1:
            for w2 in (wp - 1, wp):
                b2 = WF0 if w2 % 2 == 0 else PHT0
                lq.wait(("kx", w2))
                for j in range(3):
                    mfma(a, ACC0 + 4 * j, b2 + 4 * j, b2 + 12, None if w2 == 0 else ACC0 + 4 * j)
    cvt_pk(a, 12, ACC0 + 0, ACC0 + 1)
    cvt_pk(a, 13, ACC0 + 2, ACC0 + 3)
    cvt_pk(a, 14, ACC0 + 4, ACC0 + 5)
    cvt_pk(a, 15, ACC0 + 6, ACC0 + 7)
    a("s_lshl_b32 s%d, s%d, 2", S_T0 + 4, S_HP)
    a("s_add_u32 s%d, s%d, s%d", S_T0 + 4, S_T0 + 4, S_W)
    a("s_lshl_b32 s%d, s%d, 4", S_T0 + 5, S_T0 + 4)
    a("s_add_u32 s%d, s%d, s%d", S_T0 + 5, S_T0 + 5, S_TT)
    a("s_lshl_b32 s%d, s%d, 10", S_T0 + 6, S_T0 + 5)
    a("s_lshl_b32 s%d, s%d, 8", S_T0 + 7, S_T0 + 5)
    a("s_add_u32 s%d, s%d, 0x%x", S_T0 + 7, S_T0 + 7, WS_KV9)
    a("v_lshlrev_b32 v10, 4, v%d", V_L)
    a("v_lshlrev_b32 v11, 2, v%d", V_L)
    a("buffer_store_dwordx4 v[12:15], v10, s[%d:%d], s%d offen sc1", R_WS, R_WS + 3, S_T0 + 6)
    a("buffer_store_dword v%d, v11, s[%d:%d], s%d offen sc1", ACC0 + 8, R_WS, R_WS + 3, S_T0 + 7)
    stamp(a, 8, "kvgemm", lq)
    a("s_waitcnt vmcnt(0)")
    get_nonce(a, 16, V_Z, R_R5)
    a("s_lshl_b32 s%d, s%d, 2", S_T0 + 6, S_T0 + 5)
    a("s_add_u32 s%d, s%d, 0x%x", S_T0 + 6, S_T0 + 6, WS_FKV)
    a("v_mov_b32 v17, s%d", S_T0 + 6)
    publish_flag(a, 17, 16)
    stamp(a, 9, "kvpub", lq)
    gemm_section(a, lq, 2)
    stamp(a, 10, "qgemm", lq)
    pack_kq(a)
    lq.drain()
    feature_map(a, lq, False)
    a("v_mov_b32 v%d, 0", PHT0 + 24 - 1)
    stamp(a, 11, "qfeat", lq)
    a("s_lshl_b32 s%d, s%d, 2", S_T0 + 4, S_HP)
    a("s_add_u32 s%d, s%d, s%d", S_T0 + 4, S_T0 + 4, S_W)
    a("s_lshl_b32 s%d, s%d, 6", S_T0 + 5, S_T0 + 4)
    a("s_add_u32 s%d, s%d, 0x%x", S_T0 + 5, S_T0 + 5, WS_FKV)
    a("v_lshlrev_b32 v10, 2, v%d", V_L)
    a("v_add_u32 v11, s%d, v10", S_T0 + 5)
    poll_flags(a, 11, 12, 16)
    stamp(a, 12, "kvpoll", lq)
    a("s_lshl_b32 s%d, s%d, 14", S_T0 + 5, S_T0 + 4)
    a("s_lshl_b32 s%d, s%d, 12", S_T0 + 6, S_T0 + 4)
    a("s_add_u32 s%d, s%d, 0x%x", S_T0 + 6, S_T0 + 6, WS_KV9)
    a("v_lshlrev_b32 v11, 4, v%d", V_L)
    PA = X0
    PB = X0 + 64
    for p in range(16):
        a("s_add_u32 s%d, s%d, %d", S_T0 + 7, S_T0 + 5, p * 1024)
        a("buffer_load_dwordx4 %s, v11, s[%d:%d], s%d offen sc1", vr(PA + 4 * p, 4), R_WS, R_WS + 3, S_T0 + 7)
        a("buffer_load_dword v%d, v10, s[%d:%d], s%d offen offset:%d sc1", PB + p, R_WS, R_WS + 3, S_T0 + 6, p * 256)
    for p in range(16):
        a("s_waitcnt vmcnt(%d)", 2 * (15 - p))
        mfma(a, ACC0 + 0, SEL + 4, PA + 4 * p, None if p == 0 else ACC0 + 0)
        mfma(a, ACC0 + 4, SEL + 2, PA + 4 * p, None if p == 0 else ACC0 + 4)
        if p == 1: a("v_add_f32 v12, v%d, v%d", PB, PB + 1)
        if p > 1: a("v_add_f32 v12, v12, v%d", PB + p)
    cvt_pk(a, 16, ACC0 + 0, ACC0 + 1)
    cvt_pk(a, 17, ACC0 + 2, ACC0 + 3)
    cvt_pk(a, 18, ACC0 + 4, ACC0 + 5)
    cvt_pk(a, 19, ACC0 + 6, ACC0 + 7)
    a("v_cvt_pk_bf16_f32 v12, v12, 0")
    L_RECA, L_RECB = L_OVL, L_OVL + 4096
    a("s_lshl_b32 s%d, s%d, 10", S_T0 + 4, S_W)
    a("s_add_u32 s%d, s%d, %d", S_T0 + 4, S_T0 + 4, L_RECA)
    a("v_add_u32 v11, s%d, v11", S_T0 + 4)
    a("s_lshl_b32 s%d, s%d, 8", S_T0 + 4, S_W)
    a("s_add_u32 s%d, s%d, %d", S_T0 + 4, S_T0 + 4, L_RECB)
    a("v_add_u32 v10, s%d, v10", S_T0 + 4)
    a("ds_write_b128 v11, v[16:19]")
    a("ds_write_b32 v10, v12")
    stamp(a, 13, "kvsum", lq)
    team_barrier(a, 2, V_T + 10, V_Z, V_W4)
    lq.known_empty()
    stamp(a, 14, "recbar", lq)
    AF = WF0
    a("v_lshrrev_b32 v10, 2, v%d", V_I)
    a("v_and_b32 v11, 3, v%d", V_I)
    a("v_mul_u32_u24 v12, 3, v10")
    a("v_add_u32 v12, v12, v11")
    a("v_cmp_eq_u32 s[%d:%d], 3, v11", S_T0 + 4, S_T0 + 5)
    def rec_read(h, X, vcol_set):
        a("v_lshlrev_b32 v15, 4, v%d", V_G)
        a("v_add_u32 v15, v15, v%d", vcol_set)
        a("v_lshlrev_b32 v16, 4, v15")
        a("v_add_u32 v16, %d, v16", L_RECA)
        a("v_lshlrev_b32 v15, 2, v15")
        a("v_add_u32 v15, %d, v15", L_RECB)
        a("ds_read_b128 %s, v16", vr(AF + 4 * (h * 2 + X), 4))
        a("ds_read_b32 v%d, v15", ACC0 + 4 * (h * 2 + X))
        for i in (1, 2, 3):
            a("v_mov_b32 v%d, 0", ACC0 + 4 * (h * 2 + X) + i)
    a("v_mov_b32 v13, %d", 64 + 4)
    a("v_cndmask_b32 v14, v12, v13, s[%d:%d]", S_T0 + 4, S_T0 + 5)
    rec_read(0, 0, 14)
    a("v_add_u32 v14, %d, v12", 128 - 2)
    a("v_add_u32 v13, %d, v12", 192 + 2)
    a("v_cmp_gt_u32 vcc, 2, v12")
    a("v_cndmask_b32 v14, v14, v13, vcc")
    a("v_mov_b32 v13, %d", 192 + 4)
    a("v_cndmask_b32 v14, v14, v13, s[%d:%d]", S_T0 + 4, S_T0 + 5)
    rec_read(1, 0, 14)
    a("v_and_b32 v13, 1, v11")
    a("v_lshlrev_b32 v14, 1, v10")
    a("v_add_u32 v14, v14, v13")
    a("v_add_u32 v14, 12, v14")
    a("v_add_u32 v13, %d, v10", 64 - 2)
    a("v_cmp_gt_u32 vcc, 2, v10")
    a("v_cndmask_b32 v14, v13, v14, vcc")
    rec_read(0, 1, 14)
    a("v_add_u32 v14, %d, v10", 128 + 12 - 2)
    a("v_and_b32 v13, 1, v11")
    a("v_lshlrev_b32 v15, 1, v10")
    a("v_add_u32 v13, v13, v15")
    a("v_add_u32 v13, %d, v13", 128 + 14 - 4 - 2)
    a("v_cndmask_b32 v14, v13, v14, vcc")
    rec_read(1, 1, 14)
    a("s_waitcnt lgkmcnt(0)")
    OT = X0
    for h in range(2):
        for t in range(2):
            u0 = PHT0 + 6 * (h * 2 + t)
            for X in range(2):
                d = OT + 4 * ((h * 2 + X) * 2 + t)
                mfma(a, d, AF + 4 * (h * 2 + X), u0, None)
                mfma(a, d, ACC0 + 4 * (h * 2 + X), u0 + 4, d)
    def ot(h, X, t): return OT + 4 * ((h * 2 + X) * 2 + t)
    for t in range(2):
        for h in range(2):
            den = 10 + h
            a("v_add_f32 v%d, 0x%x, v%d", den, f2u(1e-6), ot(h, 0, t) + 3)
            a("v_rcp_f32 v%d, v%d", den, den)
            for r in range(3):
                a("v_mul_f32 v%d, v%d, v%d", ot(h, 0, t) + r, ot(h, 0, t) + r, den)
            for r in range(2):
                a("v_mul_f32 v%d, v%d, v%d", ot(h, 1, t) + r, ot(h, 1, t) + r, den)
        o = WF0 + 16 + 4 * t
        cvt_pk(a, o + 0, ot(0, 0, t), ot(0, 0, t) + 1)
        cvt_pk(a, o + 1, ot(0, 0, t) + 2, ot(0, 1, t))
        cvt_pk(a, o + 2, ot(1, 0, t), ot(1, 0, t) + 1)
        cvt_pk(a, o + 3, ot(1, 0, t) + 2, ot(1, 1, t))
    a("v_cmp_gt_u32 vcc, 2, v%d", V_G)
    a("v_cndmask_b32 v12, v%d, v%d, vcc", ot(1, 1, 0) + 1, ot(0, 1, 0) + 1)
    a("v_cndmask_b32 v13, v%d, v%d, vcc", ot(1, 1, 1) + 1, ot(0, 1, 1) + 1)
    cvt_pk(a, 12, 12, 13)
    a("s_lshl_b32 s%d, s%d, 2", S_T0 + 4, S_TT)
    a("s_add_u32 s%d, s%d, s%d", S_T0 + 4, S_T0 + 4, S_W)
    a("s_lshl_b32 s%d, s%d, 4", S_T0 + 5, S_T0 + 4)
    a("s_add_u32 s%d, s%d, s%d", S_T0 + 5, S_T0 + 5, S_HP)
    a("s_lshl_b32 s%d, s%d, 11", S_T0 + 6, S_T0 + 5)
    a("s_add_u32 s%d, s%d, 0x%x", S_T0 + 6, S_T0 + 6, WS_O)
    a("s_lshl_b32 s%d, s%d, 8", S_T0 + 7, S_T0 + 5)
    a("s_add_u32 s%d, s%d, 0x%x", S_T0 + 7, S_T0 + 7, WS_O9)
    a("v_lshlrev_b32 v10, 4, v%d", V_L)
    a("v_lshlrev_b32 v11, 2, v%d", V_L)
    for t in range(2):
        a("buffer_store_dwordx4 %s, v10, s[%d:%d], s%d offen offset:%d sc1", vr(WF0 + 16 + 4 * t, 4), R_WS, R_WS + 3, S_T0 + 6, t * 1024)
    a("buffer_store_dword v12, v11, s[%d:%d], s%d offen sc1", R_WS, R_WS + 3, S_T0 + 7)
    a("s_lshl_b32 s%d, s%d, 2", S_T0 + 6, S_T0 + 5)
    a("s_add_u32 s%d, s%d, 0x%x", S_T0 + 6, S_T0 + 6, WS_FO)
    a("v_mov_b32 v17, s%d", S_T0 + 6)
    stamp(a, 15, "p2a", lq)
    publish_flag(a, 17, 16)
    stamp(a, 16, "opub", lq)
    a("s_and_b32 s%d, s%d, 1", S_T0 + 4, S_HP)
    a("s_lshl_b32 s%d, s%d, 1", S_T0 + 4, S_T0 + 4)
    a("s_lshr_b32 s%d, s%d, 1", S_T0 + 5, S_W)
    a("s_add_u32 s%d, s%d, s%d", S_C0 + 4, S_T0 + 4, S_T0 + 5)
    a("s_lshl_b32 s%d, s%d, 2", S_T0 + 4, S_TT)
    a("s_add_u32 s%d, s%d, s%d", S_T0 + 4, S_T0 + 4, S_C0 + 4)
    a("s_lshl_b32 s%d, s%d, 6", S_T0 + 5, S_T0 + 4)
    a("s_add_u32 s%d, s%d, 0x%x", S_T0 + 5, S_T0 + 5, WS_FO)
    a("v_add_u32 v12, s%d, v11", S_T0 + 5)
    poll_flags(a, 12, 13, 16)
    stamp(a, 17, "opoll", lq)
    a("s_lshl_b32 s%d, s%d, 15", S_T0 + 5, S_T0 + 4)
    a("s_add_u32 s%d, s%d, 0x%x", S_T0 + 5, S_T0 + 5, WS_O)
    a("s_lshl_b32 s%d, s%d, 12", S_T0 + 6, S_T0 + 4)
    a("s_add_u32 s%d, s%d, 0x%x", S_T0 + 6, S_T0 + 6, WS_O9)
    N9 = ACC0
    for p in range(16):
        a("s_add_u32 s%d, s%d, %d", S_T0 + 7, S_T0 + 5, p * 2048)
        for t in range(2):
            a("buffer_load_dwordx4 %s, v10, s[%d:%d], s%d offen offset:%d sc1", vr(XR(t, p), 4), R_WS, R_WS + 3, S_T0 + 7, t * 1024)
    for p in range(16):
        a("buffer_load_dword v%d, v11, s[%d:%d], s%d offen offset:%d sc1", N9 + p, R_WS, R_WS + 3, S_T0 + 6, p * 256)
    a("s_mov_b32 s%d, 0", S_T0 + 7)
    lds_wait_ge(a, C_WOREADY, S_T0 + 7, 1, 13, V_Z)
    a("v_lshrrev_b32 v12, 1, v%d", V_G)
    a("v_lshlrev_b32 v12, 4, v12")
    a("v_and_b32 v13, 1, v%d", V_G)
    a("v_lshlrev_b32 v13, 2, v13")
    a("v_add_u32 v12, v12, v13")
    a("v_lshrrev_b32 v13, 2, v%d", V_I)
    a("v_add_u32 v12, v12, v13")
    a("v_mul_u32_u24 v12, 160, v12")
    a("v_and_b32 v13, 3, v%d", V_I)
    a("v_lshlrev_b32 v13, 3, v13")
    a("v_add_u32 v12, v12, v13")
    a("v_add_u32 v12, %d, v12", L_WO)
    a("v_add_u32 v14, 128, v12")
    a("s_and_b32 s%d, s%d, 1", S_T0 + 7, S_W)
    a("s_lshl_b32 s%d, s%d, 6", S_T0 + 7, S_T0 + 7)
    a("v_add_u32 v12, s%d, v12", S_T0 + 7)
    a("v_add_u32 v13, %d, v12", 9 * 5120)
    a("v_add_u32 v15, %d, v14", 9 * 5120)
    stamp(a, 18, "woready", lq)
    O3 = PHT0
    def wo_reads(s):
        va, vb = (12, 14) if s < 9 else (13, 15)
        off = (s % 9) * 5120
        b = WF(s & 1, 0)
        for k2, (v, o) in enumerate([(va, 0), (va, 32), (vb, 0)]):
            a("ds_read_b64_tr_b16 v[%d:%d], v%d offset:%d", b + 4 * k2, b + 4 * k2 + 1, v, off + o)
            lq.issue(("o", s, k2, 0))
            a("ds_read_b64_tr_b16 v[%d:%d], v%d offset:%d", b + 4 * k2 + 2, b + 4 * k2 + 3, v, off + o + 1280)
            lq.issue(("o", s, k2))
    lq.known_empty()
    wo_reads(0)
    t4 = a.label("t4");
    for s in range(18):
        if s + 1 < 18: wo_reads(s + 1)
        if s < 16:
            a("s_waitcnt vmcnt(%d)", 2 * (15 - s) + 16)
        if s == 16:
            a("s_waitcnt vmcnt(0)")
            for sp in range(2):
                for i in range(4):
                    lo, hi = N9 + 8 * sp + 2 * i, N9 + 8 * sp + 2 * i + 1
                    a("v_perm_b32 v%d, v%d, v%d, s%d", XR(0, 16 + sp) + i, hi, lo, S_C0 + 5)
                    a("v_perm_b32 v%d, v%d, v%d, s%d", XR(1, 16 + sp) + i, hi, lo, S_C0 + 6)
        b = WF(s & 1, 0)
        for k2 in range(2):
            lq.wait(("o", s, k2))
            for t in range(2):
                d = O3 + 4 * (2 * k2 + t)
                mfma(a, d, b + 4 * k2, XR(t, s), None if s == 0 else d)
        lq.wait(("o", s, 2))
        l1 = a.label("odd"); l2 = a.label("join")
        a("s_bitcmp1_b32 s%d, 0", S_W)
        a("s_cbranch_scc1 %s", l1)
        mfma(a, O3 + 16, b + 8, XR(0, s), None if s == 0 else O3 + 16)
        a("s_branch %s", l2)
        a(l1 + ":")
        mfma(a, O3 + 16, b + 8, XR(1, s), None if s == 0 else O3 + 16)
        a(l2 + ":")
    stamp(a, 19, "p3", lq)
    a("s_lshl_b32 s%d, s%d, 7", S_T0 + 4, S_TT)
    a("s_lshl_b32 s%d, s%d, 5", S_T0 + 5, S_C0 + 4)
    a("s_add_u32 s%d, s%d, s%d", S_T0 + 4, S_T0 + 4, S_T0 + 5)
    a("s_mul_i32 s%d, s%d, 2304", S_T0 + 4, S_T0 + 4)
    a("s_lshr_b32 s%d, s%d, 1", S_T0 + 5, S_HP)
    a("s_mul_i32 s%d, s%d, 144", S_T0 + 5, S_T0 + 5)
    a("s_add_u32 s%d, s%d, s%d", S_T0 + 4, S_T0 + 4, S_T0 + 5)
    a("s_and_b32 s%d, s%d, 1", S_T0 + 5, S_W)
    a("s_lshl_b32 s%d, s%d, 6", S_T0 + 6, S_T0 + 5)
    a("s_add_u32 s%d, s%d, s%d", S_T0 + 6, S_T0 + 6, S_T0 + 4)
    a("s_mul_i32 s%d, s%d, %d", S_T0 + 7, S_T0 + 5, 16 * 2304)
    a("s_add_u32 s%d, s%d, s%d", S_T0 + 7, S_T0 + 7, S_T0 + 4)
    a("s_mul_i32 s%d, s%d, 1536", S_T0 + 5, S_W)
    a("s_add_u32 s%d, s%d, %d", S_T0 + 5, S_T0 + 5, L_OVL)
    a("v_lshlrev_b32 v12, 6, v%d", V_I)
    a("v_lshlrev_b32 v13, 3, v%d", V_G)
    a("v_add_u32 v12, v12, v13")
    a("v_add_u32 v12, s%d, v12", S_T0 + 5)
    a("v_lshlrev_b32 v13, 4, v%d", V_L)
    a("v_add_u32 v13, s%d, v13", S_T0 + 5)
    a("v_lshrrev_b32 v14, 2, v%d", V_L)
    a("v_mul_u32_u24 v14, 2304, v14")
    a("v_and_b32 v15, 3, v%d", V_L)
    a("v_lshlrev_b32 v15, 4, v15")
    a("v_add_u32 v14, v14, v15")
    for t in range(2):
        for k2 in range(2):
            d = O3 + 4 * (2 * k2 + t)
            cvt_pk(a, 16, d, d + 1)
            cvt_pk(a, 17, d + 2, d + 3)
            a("ds_write_b64 v12, v[16:17] offset:%d", k2 * 32)
        a("s_waitcnt lgkmcnt(0)")
        a("ds_read_b128 %s, v13", vr(WF0 + 4 * t, 4))
        a("s_waitcnt lgkmcnt(0)")
        a("s_add_u32 s%d, s%d, %d", S_T0 + 5, S_T0 + 6, t * 16 * 2304)
        a("buffer_store_dwordx4 %s, v14, s[%d:%d], s%d offen", vr(WF0 + 4 * t, 4), R_OUT, R_OUT + 3, S_T0 + 5)
    cvt_pk(a, 16, O3 + 16, O3 + 17)
    cvt_pk(a, 17, O3 + 18, O3 + 19)
    a("v_mul_u32_u24 v14, 2304, v%d", V_I)
    a("v_lshlrev_b32 v15, 3, v%d", V_G)
    a("v_add_u32 v14, v14, v15")
    a("s_mov_b32 exec_hi, 0")
    a("buffer_store_dwordx2 v[16:17], v14, s[%d:%d], s%d offen offset:128", R_OUT, R_OUT + 3, S_T0 + 7)
    a("s_mov_b32 exec_hi, -1")
    a("s_waitcnt vmcnt(0)")
    stamp(a, 20, "end", lq)
    stamp(a, 21, "realend", lq, real=True)
    stamp_dump(a)

def magic_div(a, dst, src, d, maxv):
    for sh in range(16, 24):
        mul = (1 << sh) // d + 1
        if all((p * mul) >> sh == p // d for p in range(maxv)) and mul * maxv < (1 << 32) and mul < (1 << 24):
            a("v_mul_u32_u24 v%d, %d, v%d", dst, mul, src)
            a("v_lshrrev_b32 v%d, %d, v%d", dst, sh, dst)
            return
    raise ValueError

def slot_to_row(a, dst, slot, tmp):
    a("v_lshrrev_b32 v%d, 2, v%d", tmp, slot)
    a("v_lshrrev_b32 v%d, 3, v%d", dst, slot)
    a("v_xor_b32 v%d, v%d, v%d", tmp, tmp, dst)
    a("v_and_b32 v%d, 1, v%d", tmp, tmp)
    a("v_mul_u32_u24 v%d, 12, v%d", tmp, tmp)
    a("v_xor_b32 v%d, v%d, v%d", dst, slot, tmp)

def loader_wave(a):
    srd(a, R_X, P_WQKV, 576 * 3456)
    srd(a, R_R4, P_WO, 576 * 1152)
    srd(a, R_R5, P_DBG, 256)
    stamp(a, 0, "real0", real=True); stamp(a, 1, "start")
    VA = 8
    for i in range(3):
        a("v_add_u32 v2, %d, v0", 64 * i)
        magic_div(a, 3, 2, 6, 192)
        a("v_mul_u32_u24 v4, 6, v3")
        a("v_sub_u32 v4, v2, v4")
        slot_to_row(a, 5, 3, 6)
        a("v_mul_u32_u24 v5, 3456, v5")
        a("v_lshlrev_b32 v6, 4, v4")
        a("v_add_u32 v5, v5, v6")
        a("v_mov_b32 v6, 0x%x", OOB)
        a("v_cmp_gt_u32 vcc, 5, v4")
        a("v_cndmask_b32 v%d, v6, v5, vcc", VA + i)
    a("s_mul_i32 s%d, s%d, 72", S_C0, S_HP)
    secbase = [1152, 2304, 0]
    def issue(g):
        sec, s = divmod(g, 18)
        a("s_add_u32 s%d, s%d, %d", S_T0, S_C0, secbase[sec] + s * 32 * 3456)
        for i in range(3):
            a("s_mov_b32 m0, %d", L_WRING + (g % NS) * 3072 + i * 1024)
            a("buffer_load_dwordx4 v%d, s[%d:%d], s%d offen lds", VA + i, R_X, R_X + 3, S_T0)
    stamp(a, 2, "l_addr")
    for g in range(NS): issue(g)
    stamp(a, 3, "l_issued")
    nn = a.label("nn")
    a("s_cmp_lg_u32 s%d, 0", S_WG)
    a("s_cbranch_scc1 %s", nn)
    a("s_memrealtime s[%d:%d]", S_T0 + 2, S_T0 + 3)
    a("s_waitcnt lgkmcnt(0)")
    a("s_or_b32 s%d, s%d, 1", S_T0 + 2, S_T0 + 2)
    a("v_mov_b32 v2, s%d", S_T0 + 2)
    a("v_mov_b32 v3, 0")
    a("s_mov_b64 exec, 1")
    a("buffer_store_dword v2, v3, s[%d:%d], 0 offen sc1", R_R5, R_R5 + 3)
    a("s_mov_b64 exec, -1")
    extra = 1
    a(nn + ":")
    for i in range(5):
        a("v_add_u32 v2, %d, v0", 64 * i)
        magic_div(a, 3, 2, 10, 320)
        a("v_mul_u32_u24 v4, 10, v3")
        a("v_sub_u32 v4, v2, v4")
        slot_to_row(a, 5, 3, 6)
        a("v_lshrrev_b32 v6, 3, v5")
        a("v_and_b32 v7, 7, v5")
        a("v_and_b32 v22, 3, v7")
        a("v_mul_u32_u24 v23, 3, v6")
        a("v_add_u32 v23, v23, v22")
        a("v_lshlrev_b32 v24, 1, v6")
        a("v_add_u32 v24, 12, v24")
        a("v_min_u32 v24, 17, v24")
        a("v_add_u32 v25, 12, v6")
        a("v_cmp_eq_u32 vcc, 3, v6")
        a("v_mov_b32 v26, 16")
        a("v_cndmask_b32 v25, v25, v26, vcc")
        a("v_cmp_lt_u32 vcc, 3, v7")
        a("v_cndmask_b32 v24, v24, v25, vcc")
        a("v_cmp_eq_u32 vcc, 3, v22")
        a("v_cndmask_b32 v23, v23, v24, vcc")
        a("v_lshrrev_b32 v24, 2, v7")
        a("v_mul_u32_u24 v24, 18, v24")
        a("v_add_u32 v23, v23, v24")
        a("v_mul_u32_u24 v23, 1152, v23")
        a("v_lshlrev_b32 v24, 4, v4")
        a("v_add_u32 v23, v23, v24")
        a("v_mov_b32 v26, 0x%x", OOB)
        a("v_cmp_gt_u32 vcc, 9, v4")
        a("v_cndmask_b32 v%d, v26, v23, vcc", 12 + i)
        a("v_lshlrev_b32 v23, 1, v6")
        a("v_add_u32 v23, 13, v23")
        a("v_lshrrev_b32 v25, 1, v6")
        a("v_mul_u32_u24 v25, 16, v25")
        a("v_add_u32 v23, v23, v25")
        a("v_mul_u32_u24 v25, 36, v7")
        a("v_add_u32 v23, v23, v25")
        a("v_mul_u32_u24 v23, 1152, v23")
        a("v_add_u32 v23, v23, v24")
        a("v_cndmask_b32 v%d, v26, v23, vcc", 17 + i)
    a("v_mov_b32 v30, 0")
    a("s_barrier")
    a("s_mov_b32 s%d, 0", S_RDY)
    DELTA = 3
    issued = NS
    total = 54
    def publish(n):
        a("v_mov_b32 v2, %d", n)
        a("ds_write_b32 v30, v2 offset:%d", C_WREADY)
    for s in range(total):
        n = 3 * (issued - s - 1)
        a("s_waitcnt vmcnt(%d)", min(n, 63))
        publish(s + 1)
        if s in (0, 5, 17, 35, 53): stamp(a, {0: 4, 5: 5, 17: 6, 35: 7, 53: 8}[s], "l_pub%d" % s)
        nxt = s - DELTA + NS + 0
        if s >= DELTA and issued < total and nxt == issued:
            lds_wait_min4_ge(a, C_APROG, S_RDY, issued - NS + 1, 4, 30)
            issue(issued); issued += 1
    while issued < total:
        raise AssertionError
    lds_wait_min4_ge(a, C_APROG, S_RDY, total, 4, 30)
    stamp(a, 9, "l_aprog54")
    a("s_lshr_b32 s%d, s%d, 1", S_C0 + 1, S_HP)
    a("s_mul_i32 s%d, s%d, 144", S_C0 + 1, S_C0 + 1)
    cnt = 0
    for s in range(18):
        if s < 16:
            a("s_add_u32 s%d, s%d, %d", S_T0, S_C0 + 1, s * 36 * 1152)
        else:
            a("s_add_u32 s%d, s%d, %d", S_T0, S_C0 + 1, (s - 16) * 8 * 36 * 1152)
        for i in range(5):
            a("s_mov_b32 m0, %d", L_WO + s * 5120 + i * 1024)
            a("buffer_load_dwordx4 v%d, s[%d:%d], s%d offen lds", (12 if s < 16 else 17) + i, R_R4, R_R4 + 3, S_T0)
            cnt += 1
        if s >= 6: a("s_waitcnt vmcnt(30)")
    a("s_waitcnt vmcnt(0)")
    a("v_mov_b32 v2, 1")
    a("ds_write_b32 v30, v2 offset:%d", C_WOREADY)
    a("s_waitcnt lgkmcnt(0)")
    stamp(a, 10, "l_woready")
    stamp(a, 21, "realend", real=True)
    stamp_dump(a)


S_CH, S_RB = S_C0, S_C0 + 1
CS = 4160
U_OFF = 4 * CS
ROW = 272

def cmul(a, d, x, e):
    a("v_pk_mul_f32 v[%d:%d], v[%d:%d], v[%d:%d] op_sel_hi:[1,0]", d, d + 1, x, x + 1, e, e + 1)
    a("v_pk_fma_f32 v[%d:%d], v[%d:%d], v[%d:%d], v[%d:%d] op_sel:[1,1,0] op_sel_hi:[0,1,1] neg_lo:[1,0,0]",
      d, d + 1, x, x + 1, e, e + 1, d, d + 1)

def cexp(a, d, p, A2, W, t):
    a("v_mul_f32 v%d, 0x%x, v%d", t, f2u(float(p)), A2)
    a("v_mul_f32 v%d, 0x%x, v%d", t + 1, f2u(float(p)), W)
    a("v_exp_f32 v%d, v%d", t, t)
    a("v_fract_f32 v%d, v%d", t + 1, t + 1)
    a("v_cos_f32 v%d, v%d", t + 2, t + 1)
    a("v_sin_f32 v%d, v%d", t + 1, t + 1)
    a("v_mul_f32 v%d, v%d, v%d", d, t, t + 2)
    a("v_mul_f32 v%d, v%d, v%d", d + 1, t, t + 1)

def exp_bf16(a, d, x):
    a("v_mul_f32 v%d, 0x%x, v%d", d, f2u(1.4426950408889634), x)
    a("v_exp_f32 v%d, v%d", d, d)
    a("v_cvt_pk_bf16_f32 v%d, v%d, v%d", d, d, d)
    a("v_lshlrev_b32 v%d, 16, v%d", d, d)

def channel_wave(a):
    lq = LQ(a)
    srd(a, R_X, P_LOGA, 576 * 256)
    srd(a, R_WQ, P_AIM, 576 * 256)
    srd(a, R_R4, P_CRE, 576 * 256)
    srd(a, R_R5, P_CIM, 576 * 256)
    srd(a, 32, P_LDT, 1152)
    srd(a, R_OUT, P_D, 1152)
    a("s_lshl_b32 s%d, s%d, 8", S_T0, S_CH)
    a("v_lshlrev_b32 v3, 2, v0")
    for i, r in enumerate((R_X, R_WQ, R_R4, R_R5)):
        a("buffer_load_dword v%d, v3, s[%d:%d], s%d offen", 10 + i, r, r + 3, S_T0)
    a("s_lshl_b32 s%d, s%d, 1", S_T0 + 1, S_CH)
    a("v_mov_b32 v4, 0")
    a("buffer_load_ushort v14, v4, s[32:35], s%d offen", S_T0 + 1)
    a("buffer_load_ushort v15, v4, s[%d:%d], s%d offen", R_OUT, R_OUT + 3, S_T0 + 1)
    srd(a, R_R5, P_DBG, 256)
    stamp(a, 0, "real0", real=True); stamp(a, 1, "start")
    a("v_and_b32 v%d, 15, v0", V_I)
    a("v_lshrrev_b32 v%d, 4, v0", V_G)
    VW = 5
    VR = 6
    a("v_add_u32 v%d, s%d, v3", VW, S_RB)
    a("v_mul_u32_u24 v%d, %d, v%d", VR, ROW, V_I)
    a("v_lshlrev_b32 v7, 4, v%d", V_G)
    a("v_add_u32 v%d, v%d, v7", VR, VR)
    a("v_add_u32 v%d, s%d, v%d", VR, S_RB, VR)
    a("s_barrier")
    a("s_waitcnt vmcnt(0)")
    stamp(a, 2, "b_params")
    DT, DSK = 24, 15
    a("v_lshlrev_b32 v14, 16, v14")
    exp_bf16(a, DT, 14)
    a("v_lshlrev_b32 v%d, 16, v15", DSK)
    for h in range(2):
        b = 16 + 4 * h
        for i in range(4):
            if h == 0: a("v_lshlrev_b32 v%d, 16, v%d", b + i, 10 + i)
            else: a("v_and_b32 v%d, 0xffff0000, v%d", b + i, 10 + i)
        exp_bf16(a, 26, b)
        a("v_mul_f32 v%d, v26, v%d", b, DT)
        a("v_mul_f32 v%d, 0x%x, v%d", b, f2u(-1.4426950408889634), b)
        a("v_mul_f32 v%d, v%d, v%d", b + 1, b + 1, DT)
        a("v_mul_f32 v%d, 0x%x, v%d", b + 1, f2u(0.15915494309189535), b + 1)
        a("v_mul_f32 v%d, v%d, v%d", b + 2, b + 2, DT)
        a("v_mul_f32 v%d, v%d, v%d", b + 3, b + 3, DT)
        a("v_add_f32 v%d, v%d, v%d", b + 2, b + 2, b + 2)
        a("v_add_f32 v%d, v%d, v%d", b + 3, b + 3, b + 3)
    DY, DX, DZ = 28, 32, 36
    for i in range(12): a("v_mov_b32 v%d, 0", DY + i)
    A2, W, CC = 16, 17, 18
    E1, E2, E4, E8, E128, E256, E512 = 40, 42, 44, 46, 48, 50, 52
    T = 54
    PK = 60
    P0 = 64
    def put(row, x, conj=False):
        a("v_cvt_pk_bf16_f32 v%d, v%d, %sv%d", PK + (row & 1), x, "-" if conj else "", x + 1)
        a("ds_write_b32 v%d, v%d offset:%d", VW, PK + (row & 1), row * ROW)
    RY, RX, RZ = 16, 32, 48
    def rowY(al): return RY + 8 * (al // 128) + al % 128
    def rowX(al):
        if al >= 1024:
            i = (al - 1024) // 128
            return RX + 4 * (i % 4) + i // 4
        i = (al - 512) // 128
        return RX + 4 * i + 2 + (al % 128) // 4
    def rowZ(al): return RZ + 4 * ((al - 256) // 128) + (al % 128) // 2
    lp = a.label("khalf")
    a("s_mov_b32 s%d, 0", S_T0 + 2)
    a(lp + ":")
    cexp(a, E1, 1, A2, W, T)
    cexp(a, E8, 8, A2, W, T + 3)
    cexp(a, E128, 128, A2, W, T)
    cmul(a, E2, E1, E1); cmul(a, E256, E128, E128)
    cmul(a, E4, E2, E2); cmul(a, E512, E256, E256)
    a("v_mov_b32 v%d, 0x3f80", PK)
    a("ds_write_b32 v%d, v%d offset:0", VW, PK)
    put(1, E8, True)
    x = E8
    for j in range(2, 16):
        d = P0 + 2 * (j & 1)
        cmul(a, d, x, E8); put(j, d, True); x = d
    R1 = P0 + 4
    put(rowY(0), CC)
    x = CC
    for r in range(1, 8):
        d = R1 + 2 * r
        cmul(a, d, x, E1); put(rowY(r), d); x = d
    for r in range(8):
        src = CC if r == 0 else R1 + 2 * r
        cmul(a, P0, src, E128); put(rowY(128 + r), P0)
    R2 = P0 + 4
    cmul(a, R2, CC, E256); put(rowZ(256), R2)
    for r in range(1, 4):
        cmul(a, R2 + 2 * r, R2 + 2 * r - 2, E2); put(rowZ(256 + 2 * r), R2 + 2 * r)
    for r in range(4):
        cmul(a, P0, R2 + 2 * r, E128); put(rowZ(384 + 2 * r), P0)
    XA, XB = R2 + 8, R2 + 10
    X512 = R2 + 12
    cmul(a, X512, R2, E256); put(rowX(512), X512); put(RZ + 8, X512)
    cmul(a, XA, X512, E4); put(rowX(516), XA)
    s0, s1 = X512, XA
    for i in range(1, 4):
        d0, d1 = P0 + 4 * (i & 1) + 20, P0 + 4 * (i & 1) + 22
        cmul(a, d0, s0, E128); put(rowX(512 + 128 * i), d0)
        cmul(a, d1, s1, E128); put(rowX(512 + 128 * i + 4), d1)
        s0, s1 = d0, d1
    x = P0 + 2
    cmul(a, x, X512, E512); put(rowX(1024), x)
    for i in range(1, 9):
        d = P0 if x == P0 + 2 else P0 + 2
        cmul(a, d, x, E128)
        put(rowX(1024 + 128 * i) if i < 8 else RZ + 9, d); x = d
    FR = 96
    for s in range(4):
        for t in range(4):
            a("ds_read_b128 %s, v%d offset:%d", vr(FR + 16 * s + 4 * t, 4), VR, t * 16 * ROW + 64 * s)
    for s in range(4):
        a("s_waitcnt lgkmcnt(%d)", 4 * (3 - s))
        for t, D in enumerate((DY, DX, DZ)):
            mfma(a, D, FR + 16 * s + 4 * (t + 1), FR + 16 * s, D)
    for i in range(4): a("v_mov_b32 v%d, v%d", 16 + i, 20 + i)
    a("s_add_u32 s%d, s%d, 1", S_T0 + 2, S_T0 + 2)
    a("s_cmp_lt_u32 s%d, 2", S_T0 + 2)
    a("s_cbranch_scc1 %s", lp)
    stamp(a, 3, "b_kgen")
    get_nonce(a, 10, 4, R_R5)
    a("s_lshr_b32 s%d, s%d, 6", S_T0 + 4, S_CH)
    a("s_lshl_b32 s%d, s%d, 6", S_T0 + 4, S_T0 + 4)
    a("s_add_u32 s%d, s%d, 0x%x", S_T0 + 4, S_T0 + 4, WS_FU)
    a("v_add_u32 v10, s%d, v3", S_T0 + 4)
    a("s_nop 7")
    VA = 7
    a("v_lshlrev_b32 v11, 4, v0")
    a("v_sub_u32 v%d, s%d, v11", VA, S_RB)
    a("v_add_u32 v%d, %d, v%d", VA, 3 * CS + 1008, VA)
    N0, N1, N2, N3 = 40, 41, 42, 43
    def nxt(d, src, sp_reg, sp_lane):
        a("v_readlane_b32 s%d, v%d, %d", S_T0 + 5, sp_reg, sp_lane)
        a("v_mov_b32_dpp v%d, v%d wave_shl:1 row_mask:0xf bank_mask:0xf", d, src)
        a("v_writelane_b32 v%d, s%d, 63", d, S_T0 + 5)
    nxt(N0, DX + 0, DX + 1, 0)
    nxt(N1, DX + 1, DZ + 1, 32)
    nxt(N2, DX + 2, DX + 0, 0)
    a("v_mov_b32_dpp v%d, v%d wave_shl:1 row_mask:0xf bank_mask:0xf", N3, DZ + 0)
    a("v_and_b32 v11, 1, v0")
    a("v_cmp_eq_u32 vcc, 1, v11")
    Q = 44
    for k, (v, n) in enumerate(((DX + 0, N0), (DX + 1, N1))):
        q = Q + 4 * k
        a("v_cndmask_b32 v12, v%d, v%d, vcc", v, n)
        cvt_pk(a, q, n, n); cvt_pk(a, q + 1, n, 12); cvt_pk(a, q + 2, v, v); cvt_pk(a, q + 3, v, v)
        a("ds_write_b128 v%d, %s offset:%d", VA, vr(q, 4), 1024 if k == 0 else 0)
    q = Q + 8
    cvt_pk(a, q, N2, N2); cvt_pk(a, q + 1, DX + 3, DX + 3); cvt_pk(a, q + 2, DX + 3, DX + 2); cvt_pk(a, q + 3, DX + 2, DX + 2)
    a("ds_write_b128 v%d, %s offset:2048", VA, vr(q, 4))
    q = Q + 12
    cvt_pk(a, q, N3, DZ + 3); cvt_pk(a, q + 1, DZ + 2, DZ + 2); cvt_pk(a, q + 2, DZ + 2, DZ + 1); cvt_pk(a, q + 3, DZ + 0, DZ + 0)
    a("s_mov_b32 exec_hi, 0")
    a("ds_write_b128 v%d, %s offset:2560", VA, vr(q, 4))
    a("s_mov_b32 exec_hi, -1")
    a("v_lshrrev_b32 v11, 1, v%d", V_G)
    a("v_lshlrev_b32 v11, 7, v11")
    a("v_lshlrev_b32 v12, 3, v%d", V_I)
    a("v_add_u32 v11, v11, v12")
    a("v_and_b32 v12, 1, v%d", V_G)
    a("v_lshlrev_b32 v12, 2, v12")
    a("v_add_u32 v11, v11, v12")
    a("v_lshlrev_b32 v11, 1, v11")
    a("v_sub_u32 v11, s%d, v11", S_RB)
    a("v_add_u32 v11, %d, v11", 3 * CS + 2 * 2044)
    cvt_pk(a, 12, DY + 3, DY + 2); cvt_pk(a, 13, DY + 1, DY + 0)
    a("ds_write_b64 v11, v[12:13]")
    for i in range(4): a("v_mov_b32 v%d, 0", 60 + i)
    a("v_lshrrev_b32 v11, 1, v0")
    a("v_mul_u32_u24 v11, %d, v11", CS)
    a("v_and_b32 v16, 1, v0")
    a("v_lshlrev_b32 v16, 4, v16")
    a("v_add_u32 v11, v11, v16")
    a("v_add_u32 v11, s%d, v11", S_RB)
    a("s_mov_b64 exec, 0xff")
    a("ds_write_b128 v11, v[60:63] offset:4096")
    a("s_mov_b64 exec, -1")
    a("v_lshlrev_b32 v11, 4, v0")
    a("v_add_u32 v11, s%d, v11", S_RB)
    a("s_mov_b64 exec, 0x3fffffff")
    a("ds_write_b128 v11, v[60:63] offset:%d", U_OFF)
    a("s_mov_b64 exec, -1")
    for q in range(4):
        d = 44 + 20 * (q & 1)
        a("ds_read_b128 %s, v11 offset:%d", vr(d, 4), 3 * CS + 1024 * q)
        a("ds_read_b64 %s, v11 offset:%d", vr(d + 4, 2), 3 * CS + 1024 * q + 16)
        a("s_waitcnt lgkmcnt(0)")
        for k in range(4):
            a("v_alignbit_b32 v%d, v%d, v%d, 16", d + 6 + k, d + k + 1, d + k)
        for k in range(4):
            a("v_alignbit_b32 v%d, v%d, v%d, 16", d + 10 + k, d + k + 2, d + k + 1)
        for k in range(4):
            a("v_mov_b32 v%d, v%d", d + 14 + k, d + k + 1)
        a("ds_write_b128 v11, %s offset:%d", vr(d + 6, 4), 2 * CS + 1024 * q)
        a("ds_write_b128 v11, %s offset:%d", vr(d + 10, 4), 0 * CS + 1024 * q)
        a("ds_write_b128 v11, %s offset:%d", vr(d + 14, 4), 1 * CS + 1024 * q)
    stamp(a, 4, "b_expand")
    poll_flags(a, 10, 12, 16)
    stamp(a, 5, "b_upoll")
    a("s_lshl_b32 s%d, s%d, 12", S_T0 + 4, S_CH)
    a("s_add_u32 s%d, s%d, 0x%x", S_T0 + 4, S_T0 + 4, WS_UT)
    a("v_lshlrev_b32 v12, 4, v0")
    for q in range(4):
        a("s_add_u32 m0, s%d, %d", S_RB, U_OFF + 480 + 1024 * q)
        a("buffer_load_dwordx4 v12, s[%d:%d], s%d offen sc1 lds", R_WS, R_WS + 3, S_T0 + 4)
        a("s_add_u32 s%d, s%d, 1024", S_T0 + 4, S_T0 + 4)
    AA0, AA1, BB, SK = 8, 9, 10, 11
    a("v_and_b32 v13, 3, v%d", V_I)
    a("v_mul_u32_u24 v13, %d, v13", CS)
    a("v_lshrrev_b32 v14, 2, v%d", V_I)
    a("v_lshlrev_b32 v14, 3, v14")
    a("v_sub_u32 v13, v13, v14")
    a("v_lshlrev_b32 v14, 4, v%d", V_G)
    a("v_add_u32 v13, v13, v14")
    a("v_add_u32 v13, 24, v13")
    a("v_add_u32 v%d, s%d, v13", AA0, S_RB)
    a("v_add_u32 v%d, 2048, v%d", AA1, AA0)
    a("v_lshlrev_b32 v13, 5, v%d", V_I)
    a("v_add_u32 v13, v13, v14")
    a("v_add_u32 v13, s%d, v13", S_RB)
    a("v_add_u32 v%d, %d, v13", BB, U_OFF)
    a("v_lshlrev_b32 v13, 5, v%d", V_I)
    a("v_lshlrev_b32 v14, 3, v%d", V_G)
    a("v_add_u32 v13, v13, v14")
    a("v_add_u32 v13, s%d, v13", S_RB)
    a("v_add_u32 v%d, %d, v13", SK, U_OFF + 480)
    ACC = 16
    for i in range(32): a("v_mov_b32 v%d, 0", ACC + i)
    FA = [48, 112]
    SKV = 176
    UR = 208
    def frag_reads(c, st):
        out = []
        b = FA[st]
        for k in range(8):
            va = AA1 if k < 4 else AA0
            o = 248 - 64 * (k & 3) - 8 * c
            out.append("ds_read2_b64 %s, v%d offset0:%d offset1:%d" % (vr(b + 4 * k, 4), va, o, o + 1))
            out.append("ds_read_b128 %s, v%d offset:%d" % (vr(b + 32 + 4 * k, 4), BB, 512 * k + 448 - 64 * c))
        return out
    first = frag_reads(0, 0)
    for x in first[0::2]: a(x)
    a("s_waitcnt vmcnt(0)")
    stamp(a, 6, "b_uload")
    for x in first[1::2]: a(x)
    for n in range(8):
        a("ds_read_b64 %s, v%d offset:%d", vr(UR + 2 * n, 2), SK, 512 * n)
    skip = []
    for n in range(8):
        for h in range(2):
            u = UR + 2 * n + h
            d = SKV + 4 * n + 2 * h
            skip.append("v_lshlrev_b32 v%d, 16, v%d" % (d, u))
            skip.append("v_and_b32 v%d, 0xffff0000, v%d" % (d + 1, u))
            skip.append("v_mul_f32 v%d, v%d, v%d" % (d, d, DSK))
            skip.append("v_mul_f32 v%d, v%d, v%d" % (d + 1, d + 1, DSK))
            skip.append("v_cvt_pk_bf16_f32 v%d, v%d, v%d" % (u, d, d + 1))
            skip.append("v_lshlrev_b32 v%d, 16, v%d" % (d, u))
            skip.append("v_and_b32 v%d, 0xffff0000, v%d" % (d + 1, u))
    for c in range(8):
        st = c & 1
        b = FA[st]
        a("s_waitcnt lgkmcnt(0)")
        mm = []
        for aa in range(8):
            for bb in range(8 - aa):
                n = aa + bb
                mm.append("%s %s, %s, %s, %s" % (MF, vr(ACC + 4 * n, 4), vr(b + 4 * aa, 4), vr(b + 32 + 4 * bb, 4), vr(ACC + 4 * n, 4)))
        side = frag_reads(c + 1, st ^ 1) if c < 7 else []
        if c in (1, 2, 3, 4):
            k = (c - 1) * len(skip) // 4
            side = side + skip[k:k + len(skip) // 4]
        for x in weave(mm, side): a(x)
    stamp(a, 7, "b_conv")
    PKD = 48
    for n in range(8):
        p = PKD + 8 * (n >> 1) + 2 * (n & 1)
        for h in range(2):
            y = ACC + 4 * n + 2 * h
            cvt_pk(a, 12, y, y + 1)
            a("v_lshlrev_b32 v13, 16, v12")
            a("v_and_b32 v14, 0xffff0000, v12")
            a("v_add_f32 v13, v13, v%d", SKV + 4 * n + 2 * h)
            a("v_add_f32 v14, v14, v%d", SKV + 4 * n + 2 * h + 1)
            cvt_pk(a, p + h, 13, 14)
        if n & 1:
            q = PKD + 8 * (n >> 1)
            a("v_permlane16_swap_b32 v%d, v%d", q, q + 2)
            a("v_permlane16_swap_b32 v%d, v%d", q + 1, q + 3)
    a("s_lshl_b32 s%d, s%d, 12", S_T0 + 4, S_CH)
    a("s_add_u32 s%d, s%d, 0x%x", S_T0 + 4, S_T0 + 4, WS_YT)
    a("v_lshlrev_b32 v12, 4, v0")
    for p in range(4):
        a("buffer_store_dwordx4 %s, v12, s[%d:%d], s%d offen offset:%d sc1", vr(PKD + 8 * p, 4), R_WS, R_WS + 3, S_T0 + 4, 1024 * p)
    a("s_lshl_b32 s%d, s%d, 2", S_T0 + 4, S_CH)
    a("s_add_u32 s%d, s%d, 0x%x", S_T0 + 4, S_T0 + 4, WS_FY)
    a("v_mov_b32 v17, s%d", S_T0 + 4)
    publish_flag(a, 17, 16)
    stamp(a, 20, "end"); stamp(a, 21, "realend", real=True)
    stamp_dump(a)


def mover_wave(a):
    RIN = S_RB
    ST = 16384
    srd(a, R_X, P_U, 2048 * 1152)
    srd(a, R_R5, P_DBG, 256)
    stamp(a, 0, "real0", real=True); stamp(a, 1, "start")
    S_CG, S_MT = S_C0 + 2, S_C0 + 3
    a("s_lshr_b32 s%d, s%d, 4", S_CG, S_WG)
    a("s_and_b32 s%d, s%d, 15", S_MT, S_WG)
    a("v_lshrrev_b32 v3, 3, v0")
    a("v_mul_u32_u24 v3, 1152, v3")
    a("v_lshrrev_b32 v4, 4, v0")
    a("v_and_b32 v4, 1, v4")
    a("v_lshlrev_b32 v4, 1, v4")
    a("v_and_b32 v5, 7, v0")
    a("v_xor_b32 v4, v4, v5")
    a("v_lshlrev_b32 v4, 4, v4")
    a("v_add_u32 v6, v3, v4")
    a("v_xor_b32 v7, 64, v6")
    a("s_mul_i32 s%d, s%d, %d", S_T0, S_MT, 128 * 1152)
    a("s_lshl_b32 s%d, s%d, 7", S_T0 + 1, S_CG)
    a("s_add_u32 s%d, s%d, s%d", S_T0, S_T0, S_T0 + 1)
    for m in range(16):
        a("s_add_u32 m0, s%d, %d", RIN, m * 1024)
        a("buffer_load_dwordx4 v%d, s[%d:%d], s%d offen lds", 6 + (m & 1), R_X, R_X + 3, S_T0)
        a("s_add_u32 s%d, s%d, %d", S_T0, S_T0, 8 * 1152)
    a("s_barrier")
    a("v_and_b32 v%d, 15, v0", V_I)
    a("v_lshrrev_b32 v%d, 4, v0", V_G)
    a("v_lshrrev_b32 v8, 2, v%d", V_I)
    a("v_and_b32 v9, 3, v%d", V_I)
    a("v_lshlrev_b32 v10, 3, v%d", V_G)
    a("v_add_u32 v10, v10, v8")
    a("v_lshlrev_b32 v10, 7, v10")
    a("v_lshrrev_b32 v11, 1, v8")
    a("v_and_b32 v12, 1, v%d", V_G)
    a("v_lshlrev_b32 v12, 1, v12")
    a("v_or_b32 v11, v11, v12")
    a("v_lshlrev_b32 v11, 5, v11")
    a("v_add_u32 v10, v10, v11")
    a("v_lshlrev_b32 v11, 3, v9")
    a("v_add_u32 v10, v10, v11")
    a("v_add_u32 v10, s%d, v10", RIN)
    a("v_xor_b32 v11, v%d, v%d", V_G, V_I)
    a("v_lshlrev_b32 v11, 4, v11")
    a("v_lshlrev_b32 v12, 8, v%d", V_I)
    a("v_add_u32 v11, v11, v12")
    a("v_add_u32 v11, s%d, v11", RIN)
    a("v_add_u32 v11, %d, v11", ST)
    a("v_xor_b32 v12, v%d, v%d", V_G, V_I)
    a("v_lshlrev_b32 v12, 4, v12")
    a("v_lshlrev_b32 v13, 8, v%d", V_G)
    a("v_add_u32 v12, v12, v13")
    a("v_add_u32 v12, s%d, v12", RIN)
    a("v_add_u32 v12, %d, v12", ST)
    a("v_lshlrev_b32 v13, 12, v%d", V_G)
    a("v_lshlrev_b32 v14, 4, v%d", V_I)
    a("v_add_u32 v13, v13, v14")
    a("s_lshl_b32 s%d, s%d, 18", S_T0, S_CG)
    a("s_lshl_b32 s%d, s%d, 8", S_T0 + 1, S_MT)
    a("s_add_u32 s%d, s%d, s%d", S_T0, S_T0, S_T0 + 1)
    a("s_add_u32 s%d, s%d, 0x%x", S_T0, S_T0, WS_UT)
    a("s_waitcnt vmcnt(0)")
    stamp(a, 2, "m_uload")
    for cb in range(4):
        a("v_xor_b32 v14, %d, v10", 32 * cb)
        R = 32 + 16 * (cb & 1)
        for w in range(4):
            a("ds_read_b64_tr_b16 v[%d:%d], v14 offset:%d", R + 4 * w, R + 4 * w + 1, 4096 * w)
            a("ds_read_b64_tr_b16 v[%d:%d], v14 offset:%d", R + 4 * w + 2, R + 4 * w + 3, 4096 * w + 512)
        for w in range(4):
            a("v_xor_b32 v15, %d, v11", 64 * w)
            if w == 0: a("s_waitcnt lgkmcnt(0)")
            a("ds_write_b128 v15, %s", vr(R + 4 * w, 4))
        O = 64 + 16 * (cb & 1)
        for r in range(4):
            a("v_xor_b32 v15, %d, v12", 64 * r)
            a("ds_read_b128 %s, v15 offset:%d", vr(O + 4 * r, 4), 1024 * r)
        for r in range(4):
            a("s_waitcnt lgkmcnt(%d)", 3 - r)
            a("buffer_store_dwordx4 %s, v13, s[%d:%d], s%d offen sc1", vr(O + 4 * r, 4), R_WS, R_WS + 3, S_T0)
            a("s_add_u32 s%d, s%d, %d", S_T0, S_T0, 4 * 4096)
    a("v_mov_b32 v9, 0")
    a("s_waitcnt vmcnt(0)")
    get_nonce(a, 16, 9, R_R5)
    a("s_lshl_b32 s%d, s%d, 2", S_T0 + 4, S_WG)
    a("s_add_u32 s%d, s%d, 0x%x", S_T0 + 4, S_T0 + 4, WS_FU)
    a("v_mov_b32 v17, s%d", S_T0 + 4)
    publish_flag(a, 17, 16)
    stamp(a, 3, "m_upub")
    a("v_lshlrev_b32 v3, 12, v%d", V_G)
    a("v_lshrrev_b32 v4, 3, v0")
    a("v_and_b32 v4, 1, v4")
    a("v_lshlrev_b32 v4, 9, v4")
    a("v_add_u32 v3, v3, v4")
    a("v_and_b32 v4, 7, v0")
    a("v_xor_b32 v4, v4, v%d", V_G)
    a("v_lshlrev_b32 v4, 4, v4")
    a("v_add_u32 v6, v3, v4")
    a("v_xor_b32 v7, 64, v6")
    a("s_lshl_b32 s%d, s%d, 18", S_T0, S_CG)
    a("s_lshr_b32 s%d, s%d, 2", S_T0 + 1, S_MT)
    a("s_lshl_b32 s%d, s%d, 10", S_T0 + 1, S_T0 + 1)
    a("s_add_u32 s%d, s%d, s%d", S_T0, S_T0, S_T0 + 1)
    a("s_and_b32 s%d, s%d, 3", S_T0 + 1, S_MT)
    a("s_lshl_b32 s%d, s%d, 7", S_T0 + 1, S_T0 + 1)
    a("s_add_u32 s%d, s%d, s%d", S_T0, S_T0, S_T0 + 1)
    a("s_add_u32 s%d, s%d, 0x%x", S_T0 + 6, S_T0, WS_YT)
    a("v_lshrrev_b32 v8, 2, v%d", V_I)
    a("v_and_b32 v9, 3, v%d", V_I)
    a("v_lshlrev_b32 v10, 3, v%d", V_G)
    a("v_add_u32 v10, v10, v8")
    a("v_lshlrev_b32 v10, 8, v10")
    a("v_lshrrev_b32 v11, 1, v9")
    a("v_lshlrev_b32 v11, 7, v11")
    a("v_add_u32 v10, v10, v11")
    a("v_and_b32 v11, 1, v9")
    a("v_lshlrev_b32 v11, 3, v11")
    a("v_add_u32 v10, v10, v11")
    a("v_and_b32 v11, 1, v%d", V_G)
    a("v_lshlrev_b32 v11, 2, v11")
    a("v_or_b32 v11, v11, v8")
    a("v_lshlrev_b32 v11, 4, v11")
    a("v_add_u32 v10, v10, v11")
    a("v_add_u32 v10, s%d, v10", RIN)
    a("v_lshrrev_b32 v11, 1, v%d", V_I)
    a("v_xor_b32 v11, v11, v%d", V_G)
    a("v_lshlrev_b32 v11, 4, v11")
    a("v_lshlrev_b32 v12, 7, v%d", V_I)
    a("v_add_u32 v11, v11, v12")
    a("v_add_u32 v11, s%d, v11", RIN)
    a("v_add_u32 v11, %d, v11", ST)
    a("v_xor_b32 v18, 64, v11")
    a("v_lshrrev_b32 v12, 3, v0")
    a("v_lshrrev_b32 v13, 1, v12")
    a("v_and_b32 v14, 7, v0")
    a("v_xor_b32 v13, v13, v14")
    a("v_lshlrev_b32 v13, 4, v13")
    a("v_lshlrev_b32 v15, 7, v12")
    a("v_add_u32 v13, v13, v15")
    a("v_add_u32 v13, s%d, v13", RIN)
    a("v_add_u32 v13, %d, v13", ST)
    a("v_xor_b32 v19, 64, v13")
    a("v_mul_u32_u24 v12, 2304, v12")
    a("v_lshlrev_b32 v14, 4, v14")
    a("v_add_u32 v12, v12, v14")
    a("s_mul_i32 s%d, s%d, %d", S_T0 + 7, S_MT, 128 * 2304)
    a("s_lshl_b32 s%d, s%d, 7", S_T0 + 1, S_CG)
    a("s_add_u32 s%d, s%d, s%d", S_T0 + 7, S_T0 + 7, S_T0 + 1)
    a("s_add_u32 s%d, s%d, 1152", S_T0 + 7, S_T0 + 7)
    a("s_lshl_b32 s%d, s%d, 8", S_T0 + 4, S_CG)
    a("s_add_u32 s%d, s%d, 0x%x", S_T0 + 4, S_T0 + 4, WS_FY)
    a("v_lshlrev_b32 v14, 2, v0")
    a("v_add_u32 v14, s%d, v14", S_T0 + 4)
    poll_flags(a, 14, 15, 64)
    stamp(a, 4, "m_ypoll")
    for m in range(16):
        a("s_add_u32 m0, s%d, %d", RIN, m * 1024)
        a("buffer_load_dwordx4 v%d, s[%d:%d], s%d offen sc1 lds", 6 + ((m >> 1) & 1), R_WS, R_WS + 3, S_T0 + 6)
        a("s_add_u32 s%d, s%d, %d", S_T0 + 6, S_T0 + 6, 4 * 4096)
    a("s_waitcnt vmcnt(0)")
    stamp(a, 5, "m_yload")
    for ii in range(8):
        a("v_xor_b32 v14, %d, v10", 16 * ii)
        R = 32 + 8 * (ii & 1)
        sb = 2048 * (ii & 1)
        for hh in range(2):
            a("ds_read_b64_tr_b16 v[%d:%d], v14 offset:%d", R + 4 * hh, R + 4 * hh + 1, 8192 * hh)
            a("ds_read_b64_tr_b16 v[%d:%d], v14 offset:%d", R + 4 * hh + 2, R + 4 * hh + 3, 8192 * hh + 1024)
        a("s_waitcnt lgkmcnt(2)")
        a("ds_write_b128 v11, %s offset:%d", vr(R, 4), sb)
        a("s_waitcnt lgkmcnt(1)")
        a("ds_write_b128 v18, %s offset:%d", vr(R + 4, 4), sb)
        O = 64 + 8 * (ii & 1)
        a("ds_read_b128 %s, v13 offset:%d", vr(O, 4), sb)
        a("ds_read_b128 %s, v19 offset:%d", vr(O + 4, 4), sb + 1024)
        for r in range(2):
            a("s_waitcnt lgkmcnt(%d)", 1 - r)
            a("buffer_store_dwordx4 %s, v12, s[%d:%d], s%d offen", vr(O + 4 * r, 4), R_OUT, R_OUT + 3, S_T0 + 7)
            a("s_add_u32 s%d, s%d, %d", S_T0 + 7, S_T0 + 7, 8 * 2304)
    a("s_waitcnt vmcnt(0)")
    stamp(a, 20, "end"); stamp(a, 21, "realend", real=True)
    stamp_dump(a)

def build():
    a = Asm()
    a("s_cmp_ge_u32 s2, 256")
    a("s_cbranch_scc1 L_end")
    a("s_load_dwordx16 s[36:51], s[0:1], 0")
    a("s_load_dwordx8 s[52:59], s[0:1], 64")
    a("s_load_dwordx4 s[60:63], s[0:1], 96")
    a("v_lshrrev_b32 v1, 6, v0")
    a("v_and_b32 v0, 63, v0")
    a("s_and_b32 s6, s2, 7")
    a("v_readfirstlane_b32 s%d, v1", S_W)
    a("s_lshr_b32 s7, s2, 3")
    a("s_lshr_b32 s%d, s6, 1", S_TT)
    a("s_lshl_b32 s%d, s%d, 2", S_TT, S_TT)
    a("s_and_b32 s%d, s7, 3", S_T0)
    a("s_add_u32 s%d, s%d, s%d", S_TT, S_TT, S_T0)
    a("s_and_b32 s%d, s6, 1", S_HP)
    a("s_lshl_b32 s%d, s%d, 3", S_HP, S_HP)
    a("s_lshr_b32 s%d, s7, 2", S_T0)
    a("s_add_u32 s%d, s%d, s%d", S_HP, S_HP, S_T0)
    a("s_mov_b32 s%d, 0x40000", S_SPIN)
    a("s_mov_b32 s%d, 0x05040100", S_C0 + 5)
    a("s_mov_b32 s%d, 0x07060302", S_C0 + 6)
    a("s_waitcnt lgkmcnt(0)")
    srd(a, R_WS, P_WS, WS_SIZE)
    srd(a, R_OUT, P_OUT, 2048 * 2304)
    a("s_cmp_eq_u32 s%d, 7", S_W)
    a("s_cbranch_scc1 L_loader")
    a("s_cmp_ge_u32 s%d, 4", S_W)
    a("s_cbranch_scc1 L_bteam")
    a_wave(a)
    a("s_endpgm")
    a("L_loader:")
    loader_wave(a)
    a("s_endpgm")
    a("L_bteam:")
    a("s_sub_u32 s%d, s%d, 4", S_T0, S_W)
    a("s_mul_i32 s%d, s%d, %d", S_RB, S_T0, B_REGION)
    a("s_add_u32 s%d, s%d, %d", S_RB, S_RB, L_B)
    a("s_lshl_b32 s%d, s%d, 1", S_CH, S_WG)
    a("s_add_u32 s%d, s%d, s%d", S_CH, S_CH, S_T0)
    a("s_cmp_lt_u32 s%d, 6", S_W)
    a("s_cbranch_scc1 L_channel")
    a("s_cmp_lt_u32 s%d, 144", S_WG)
    a("s_cbranch_scc1 L_mover")
    a("s_add_u32 s%d, s%d, %d", S_CH, S_WG, 512 - 192)
    a("s_cmp_ge_u32 s%d, 192", S_WG)
    a("s_cbranch_scc1 L_channel")
    a("s_barrier")
    a("s_endpgm")
    a("L_channel:")
    channel_wave(a)
    a("s_endpgm")
    a("L_mover:")
    mover_wave(a)
    a("L_end:")
    a("s_endpgm")
    body = pad(a.lines)
    k = NAME + "_kernel"
    hdr = open("cdna_kernels/%s.s.ref" % NAME).read().split("; Override launch geometry")[0]
    s = hdr
    s += "; @launch grid=(256,1,1) block=(512,1,1) lds=%d\n" % LDS_TOTAL
    s += '.amdgcn_target "amdgcn-amd-amdhsa--gfx950"\n.text\n'
    s += ".globl %s\n.p2align 8\n.type %s,@function\n%s:\n" % (k, k, k)
    s += "\n".join(body) + "\n"
    s += '.section .rodata,"a"\n.p2align 6\n.amdhsa_kernel %s\n' % k
    s += "  .amdhsa_next_free_vgpr 256\n  .amdhsa_next_free_sgpr 102\n  .amdhsa_accum_offset 256\n"
    s += "  .amdhsa_group_segment_fixed_size 0\n  .amdhsa_kernarg_size 112\n  .amdhsa_user_sgpr_count 2\n"
    s += "  .amdhsa_user_sgpr_kernarg_segment_ptr 1\n  .amdhsa_system_sgpr_workgroup_id_x 1\n.end_amdhsa_kernel\n"
    return s

if __name__ == "__main__":
    out = sys.argv[1]
    open(out, "w").write(build())
    print("wrote", out)
```

```python
import sys, struct
from gen_core import *

NAME = "concat_heads__linear_kernel_hedgehog__ssm_conv_s4d__prompt"
OPT = dict(A=1, B=1, dbg=0, stamps=0, hst=0)
for x in sys.argv[2:]:
    k, v = x.split("=")
    OPT[k] = int(v, 0)

def f2u(x): return struct.unpack("<I", struct.pack("<f", x))[0]

L_CTRL = 0
C_WREADY, C_APROG, C_TB, C_WOREADY, C_PHI = 0, 16, 32, 48, 64
NS = 14
L_WRING = 256
L_XRING = L_WRING + NS * 3072
L_WO = 256
L_OVL = L_XRING + 4 * 12288
L_PHIRAW = L_OVL + 6144
L_B = L_PHIRAW + 1536
B_REGION = 21248
LDS_TOTAL = L_B + 3 * B_REGION
assert LDS_TOTAL == 163840

WS_KV, WS_KV9, WS_O, WS_O9 = 0x0, 0x100000, 0x200000, 0x400000
WS_FKV, WS_FO, WS_FU, WS_FY = 0x480000, 0x481000, 0x482000, 0x483000
WS_UT, WS_YT = 0x500000, 0x780000
WS_DBG = 0xB00000
WS_STAMP = 0x9C0000
WS_SIZE = 0x2000000
OOB = 0x40000000

S_WG, S_W, S_TT, S_HP = 2, 3, 4, 5
R_X, R_WQ, R_WS, R_OUT, R_R4, R_R5 = 8, 12, 16, 20, 24, 28
P_X, P_WQKV, P_PHI, P_WO, P_U, P_LOGA, P_AIM, P_CRE, P_CIM, P_LDT, P_D, P_OUT, P_DBG, P_WS = [36 + 2 * i for i in range(14)]
S_SPIN, S_RDY, S_NONCE = 64, 65, 66
S_T0 = 68
S_C0 = 80

def srd(a, r, p, nbytes):
    a("s_mov_b32 s%d, s%d", r, p)
    a("s_mov_b32 s%d, s%d", r + 1, p + 1)
    a("s_mov_b32 s%d, 0x%x", r + 2, nbytes)
    a("s_mov_b32 s%d, 0x20000", r + 3)

class LQ:
    def __init__(self, a): self.a = a; self.q = []
    def issue(self, tag): self.q.append(tag)
    def wait(self, tag):
        idx = [i for i, t in enumerate(self.q) if t == tag]
        if not idx: return
        n = len(self.q) - 1 - idx[-1]
        assert n <= 15, n
        self.a("s_waitcnt lgkmcnt(%d)", n)
        self.q = self.q[idx[-1] + 1:]
    def drain(self):
        self.a("s_waitcnt lgkmcnt(0)"); self.q = []
    def known_empty(self): self.q = []

def spin_loop(a, lab_loop, by=1):
    a("s_sub_u32 s%d, s%d, %d", S_SPIN, S_SPIN, by)
    a("s_cbranch_scc0 %s", lab_loop)
    a("s_mov_b32 s%d, 0", S_SPIN)

def lds_wait_ge(a, off, cached, value, vt, vz):
    ok = a.label("ok"); lp = a.label("poll")
    a("s_cmp_ge_u32 s%d, %d", cached, value)
    a("s_cbranch_scc1 %s", ok)
    a(lp + ":")
    a("ds_read_b32 v%d, v%d offset:%d", vt, vz, off)
    a("s_waitcnt lgkmcnt(0)")
    a("v_readfirstlane_b32 s%d, v%d", cached, vt)
    a("s_cmp_ge_u32 s%d, %d", cached, value)
    a("s_cbranch_scc1 %s", ok)
    spin_loop(a, lp)
    a(ok + ":")

def lds_wait_min4_ge(a, off, cached, value, vt, vz):
    ok = a.label("ok"); lp = a.label("poll")
    a("s_cmp_ge_u32 s%d, %d", cached, value)
    a("s_cbranch_scc1 %s", ok)
    a(lp + ":")
    a("ds_read_b128 v[%d:%d], v%d offset:%d", vt, vt + 3, vz, off)
    a("s_waitcnt lgkmcnt(0)")
    a("v_min_u32 v%d, v%d, v%d", vt, vt, vt + 1)
    a("v_min3_u32 v%d, v%d, v%d, v%d", vt, vt, vt + 2, vt + 3)
    a("v_readfirstlane_b32 s%d, v%d", cached, vt)
    a("s_cmp_ge_u32 s%d, %d", cached, value)
    a("s_cbranch_scc1 %s", ok)
    spin_loop(a, lp)
    a(ok + ":")

def team_barrier(a, epoch, vt, vz, vw4):
    a("s_waitcnt lgkmcnt(0)")
    a("v_mov_b32 v%d, %d", vt, epoch)
    a("ds_write_b32 v%d, v%d offset:%d", vw4, vt, C_TB)
    a("s_mov_b32 s%d, 0", S_T0)
    lds_wait_min4_ge(a, C_TB, S_T0, epoch, vt, vz)

def get_nonce(a, vt, vz, rdbg):
    ok = a.label("ok"); lp = a.label("poll")
    a(lp + ":")
    a("buffer_load_dword v%d, v%d, s[%d:%d], 0 offen sc1", vt, vz, rdbg, rdbg + 3)
    a("s_waitcnt vmcnt(0)")
    a("v_readfirstlane_b32 s%d, v%d", S_NONCE, vt)
    a("s_cmp_lg_u32 s%d, 0", S_NONCE)
    a("s_cbranch_scc1 %s", ok)
    a("s_sleep 1")
    spin_loop(a, lp, 64)
    a(ok + ":")

def poll_flags(a, vaddr, vt, nlanes):
    ok = a.label("ok"); lp = a.label("poll")
    a("s_mov_b64 s[%d:%d], exec", S_T0 + 2, S_T0 + 3)
    if nlanes < 64:
        a("s_mov_b64 exec, 0x%x", (1 << nlanes) - 1) if nlanes <= 31 else None
        if nlanes > 31:
            a("s_bfm_b64 exec, %d, 0", nlanes)
    a(lp + ":")
    a("buffer_load_dword v%d, v%d, s[%d:%d], 0 offen sc1", vt, vaddr, R_WS, R_WS + 3)
    a("s_waitcnt vmcnt(0)")
    a("v_cmp_ne_u32 vcc, s%d, v%d", S_NONCE, vt)
    a("s_cmp_eq_u64 vcc, 0")
    a("s_cbranch_scc1 %s", ok)
    a("s_sleep 1")
    spin_loop(a, lp, 64)
    a(ok + ":")
    a("s_mov_b64 exec, s[%d:%d]", S_T0 + 2, S_T0 + 3)

def publish_flag(a, vaddr, vt):
    a("s_waitcnt vmcnt(0)")
    a("v_mov_b32 v%d, s%d", vt, S_NONCE)
    a("s_mov_b64 exec, 1")
    a("buffer_store_dword v%d, v%d, s[%d:%d], 0 offen sc1", vt, vaddr, R_WS, R_WS + 3)
    a("s_mov_b64 exec, -1")

STAMP0 = 36
STAMP_NAMES = {}
def stamp(a, idx, name, lq=None, real=False):
    if not OPT["stamps"]: return
    STAMP_NAMES[idx] = name
    a("s_memrealtime s[100:101]" if (real or OPT["hst"]) else "s_memtime s[100:101]")
    a("s_waitcnt lgkmcnt(0)")
    a("s_mov_b32 s%d, s100", STAMP0 + idx)
    if lq is not None: lq.known_empty()

HST_SEL = {1: [1, 2, 3, 4, 5, 6, 9, 10, 11, 12, 13, 16, 17, 19, 20]}
def stamp_dump(a, n=28, role=None):
    if not OPT["stamps"]: return
    if OPT["hst"]:
        if role != "A": return
        sk = a.label("hsk")
        a("s_cmp_lg_u32 s%d, %d", S_WG, OPT["hst"] - 1)
        a("s_cbranch_scc1 %s", sk)
        a("s_cmp_lg_u32 s%d, 0", S_W)
        a("s_cbranch_scc1 %s", sk)
        a("v_mov_b32 v10, 0")
        for i, k in enumerate(HST_SEL[1]):
            a("v_writelane_b32 v10, s%d, %d", STAMP0 + k, i + 1)
        a("v_lshlrev_b32 v11, 2, v0")
        a("s_mov_b64 exec, 0xfffe")
        a("buffer_store_dword v10, v11, s[%d:%d], 0 offen", R_R5, R_R5 + 3)
        a("s_mov_b64 exec, -1")
        a("s_waitcnt vmcnt(0)")
        a(sk + ":")
        return
    a("v_mov_b32 v10, 0")
    for i in range(n):
        a("v_writelane_b32 v10, s%d, %d", STAMP0 + i, i)
    a("s_lshl_b32 s%d, s%d, 3", S_T0 + 6, S_WG)
    a("s_add_u32 s%d, s%d, s%d", S_T0 + 6, S_T0 + 6, S_W)
    a("s_lshl_b32 s%d, s%d, 8", S_T0 + 6, S_T0 + 6)
    a("s_add_u32 s%d, s%d, 0x%x", S_T0 + 6, S_T0 + 6, WS_STAMP)
    a("v_mbcnt_lo_u32_b32 v11, -1, 0")
    a("v_mbcnt_hi_u32_b32 v11, -1, v11")
    a("v_lshlrev_b32 v11, 2, v11")
    a("buffer_store_dword v10, v11, s[%d:%d], s%d offen", R_WS, R_WS + 3, S_T0 + 6)
    a("s_waitcnt vmcnt(0)")

MF = "v_mfma_f32_16x16x32_bf16"
def mfma(a, d, x, y, c):
    cs = "0" if c is None else vr(c, 4)
    a("%s %s, %s, %s, %s", MF, vr(d, 4), vr(x, 4), vr(y, 4), cs)

X0 = 112
def XR(t, s): return X0 + 8 * s + 4 * t
WF0 = 88
def WF(b, tau): return WF0 + 12 * b + 4 * tau
ACC0 = 64
def ACC(tau, t): return ACC0 + 8 * tau + 4 * t
KP0 = 52
SEL = 44
PHT0 = 20
V_Z = SEL + 1
V_L, V_I, V_G = 0, 1, 2
V_W4 = 3
V_WA, V_WB = 4, 5
V_T = 6

def a_setup(a):
    a("v_and_b32 v%d, 15, v%d", V_I, V_L)
    a("v_lshrrev_b32 v%d, 4, v%d", V_G, V_L)
    a("v_mov_b32 v%d, s%d", V_W4, S_W)
    a("v_lshlrev_b32 v%d, 2, v%d", V_W4, V_W4)
    a("v_lshrrev_b32 v8, 3, v%d", V_L)
    a("v_mul_u32_u24 v8, 1152, v8")
    a("v_and_b32 v9, 7, v%d", V_L)
    a("v_xor_b32 v9, v9, v%d", V_G)
    a("v_lshlrev_b32 v9, 4, v9")
    a("v_add_u32 v6, v8, v9")
    a("v_xor_b32 v7, 64, v6")
    a("s_lshl_b32 s%d, s%d, 7", S_C0, S_TT)
    a("s_lshl_b32 s%d, s%d, 5", S_T0, S_W)
    a("s_add_u32 s%d, s%d, s%d", S_C0, S_C0, S_T0)
    a("s_mul_i32 s%d, s%d, 1152", S_C0, S_C0)
    a("s_mul_i32 s%d, s%d, 12288", S_C0 + 1, S_W)
    a("s_add_u32 s%d, s%d, %d", S_C0 + 1, S_C0 + 1, L_XRING)

def x_issue(a, c):
    slot = c % 3
    for m in range(4):
        a("s_add_u32 m0, s%d, %d", S_C0 + 1, slot * 4096 + m * 1024)
        a("s_add_u32 s%d, s%d, %d", S_T0, S_C0, c * 128 + m * 9216)
        a("buffer_load_dwordx4 v%d, s[%d:%d], s%d offen lds", 6 + (m & 1), R_X, R_X + 3, S_T0)

def a_setup2(a):
    a("v_lshrrev_b32 v10, 1, v%d", V_I)
    a("v_and_b32 v10, 7, v10")
    a("v_xor_b32 v10, v10, v%d", V_G)
    a("v_lshlrev_b32 v11, 3, v%d", V_I)
    a("v_add_u32 v10, v10, v11")
    a("v_lshlrev_b32 v10, 4, v10")
    a("v_add_u32 v8, s%d, v10", S_C0 + 1)
    a("v_xor_b32 v9, 64, v8")
    a("v_lshrrev_b32 v10, 1, v%d", V_G)
    a("v_lshlrev_b32 v10, 4, v10")
    a("v_and_b32 v11, 1, v%d", V_G)
    a("v_lshlrev_b32 v11, 2, v11")
    a("v_add_u32 v10, v10, v11")
    a("v_lshrrev_b32 v11, 2, v%d", V_I)
    a("v_add_u32 v10, v10, v11")
    a("v_mul_u32_u24 v10, 96, v10")
    a("v_add_u32 v10, %d, v10", L_WRING)
    a("v_add_u32 v%d, 32, v10", V_WB)
    a("v_and_b32 v11, 3, v%d", V_I)
    a("v_lshlrev_b32 v11, 3, v11")
    a("v_add_u32 v%d, v10, v11", V_WA)
    a("v_lshrrev_b32 v10, 2, v%d", V_I)
    a("v_cmp_eq_u32 vcc, v10, v%d", V_G)
    a("v_and_b32 v11, 3, v%d", V_I)
    a("v_and_b32 v12, 1, v11")
    a("v_lshlrev_b32 v12, 4, v12")
    a("v_mov_b32 v13, 0x3f80")
    a("v_lshlrev_b32 v13, v12, v13")
    a("v_cndmask_b32 v13, 0, v13, vcc")
    a("v_cmp_gt_u32 vcc, 2, v11")
    a("v_cndmask_b32 v%d, 0, v13, vcc", SEL + 4)
    a("v_cndmask_b32 v%d, v13, 0, vcc", SEL + 5) if False else None
    a("v_mov_b32 v14, 0")
    a("v_cndmask_b32 v%d, v13, v14, vcc", SEL + 5)
    a("v_and_b32 v%d, 0xffff, v%d", SEL + 0, SEL + 4)
    for i in (1, 2, 3, 6, 7):
        a("v_mov_b32 v%d, 0", SEL + i)

def phi_raw_issue(a):
    a("s_mul_i32 s%d, s%d, 1296", S_T0 + 1, S_HP)
    a("v_lshlrev_b32 v10, 4, v%d", V_L)
    a("s_mov_b32 m0, %d", L_PHIRAW)
    a("buffer_load_dwordx4 v10, s[%d:%d], s%d offen lds", R_R4, R_R4 + 3, S_T0 + 1)
    a("v_add_u32 v11, 1024, v10")
    a("v_mov_b32 v12, 0x%x", OOB)
    a("v_cmp_gt_u32 vcc, 17, v%d", V_L)
    a("v_cndmask_b32 v11, v12, v11, vcc")
    a("s_mov_b32 m0, %d", L_PHIRAW + 1024)
    a("s_mov_b32 exec_hi, 0")
    a("buffer_load_dwordx4 v11, s[%d:%d], s%d offen lds", R_R4, R_R4 + 3, S_T0 + 1)
    a("s_mov_b32 exec_hi, -1")

def phi_build(a, h, u):
    a("v_and_b32 v10, 3, v%d", V_I)
    a("v_add_u32 v10, %d, v10", 4 * u)
    a("v_lshrrev_b32 v11, 2, v%d", V_I)
    a("v_and_b32 v11, 1, v11")
    a("v_mul_u32_u24 v11, 9, v11")
    a("v_add_u32 v11, v11, v10")
    a("v_cmp_gt_u32 s[%d:%d], 9, v10", S_T0 + 4, S_T0 + 5)
    a("v_lshlrev_b32 v12, 2, v%d", V_G)
    a("v_add_u32 v12, %d, v12", 16 * h - 18 * h)
    for j in range(8):
        dj = j if j < 4 else 16 + (j - 4)
        a("v_add_u32 v13, %d, v12", dj)
        a("v_cmp_gt_u32 vcc, 18, v13")
        a("s_and_b64 vcc, vcc, s[%d:%d]", S_T0 + 4, S_T0 + 5)
        a("v_mul_u32_u24 v13, 18, v13")
        a("v_add_u32 v13, v13, v11")
        a("v_lshlrev_b32 v13, 1, v13")
        a("v_add_u32 v13, %d, v13", L_PHIRAW + h * 648)
        a("v_mov_b32 v14, %d", L_PHIRAW + 1400)
        a("v_cndmask_b32 v13, v14, v13, vcc")
        a("ds_read_u16 v%d, v13", 20 + j)
    a("s_waitcnt lgkmcnt(0)")
    for r in range(4):
        a("v_lshl_or_b32 v%d, v%d, 16, v%d", 16 + r, 21 + 2 * r, 20 + 2 * r)
    a("v_lshrrev_b32 v10, 3, v%d", V_I)
    a("v_mul_u32_u24 v10, 0x8000, v10")
    a("v_lshlrev_b32 v11, 16, v10")
    a("v_or_b32 v10, v10, v11")
    for r in range(4):
        a("v_xor_b32 v%d, v%d, v10", 16 + r, 16 + r)
    a("v_lshlrev_b32 v11, 4, v%d", V_L)
    a("v_add_u32 v11, %d, v11", L_OVL + (h * 3 + u) * 1024)
    a("ds_write_b128 v11, v[16:19]")

def gemm_section(a, lq, sec, pre=None, side=None):
    base = 18 * sec
    vz = V_Z
    if sec == 1:
        tiles = [(V_WA, 0), (V_WB, 0), (V_WA, 40)]
    else:
        tiles = [(V_WA, 0), (V_WA, 32), (V_WA, 64)]
    def reads(s):
        g = base + s
        off = (g % NS) * 3072
        for tau, (va, o) in enumerate(tiles):
            r = WF(g & 1, tau)
            a("ds_read_b64_tr_b16 v[%d:%d], v%d offset:%d", r, r + 1, va, off + o)
            lq.issue(("w", g, tau, 0))
            a("ds_read_b64_tr_b16 v[%d:%d], v%d offset:%d", r + 2, r + 3, va, off + o + 768)
            lq.issue(("w", g, tau))
    def xchunk(c):
        later = min(8, c + 2) - c
        a("s_waitcnt vmcnt(%d)", 4 * later)
        for h in range(2):
            for t in range(2):
                a("ds_read_b128 %s, v%d offset:%d", vr(XR(t, 2 * c + h), 4), 8 + h, (c % 3) * 4096 + t * 2048)
                lq.issue(("x", c, h, t))
    if sec == 0:
        xchunk(0)
    lds_wait_ge(a, C_WREADY, S_RDY, base + 1, V_T + 10, vz)
    reads(0)
    for s in range(18):
        g = base + s
        newx = (sec == 0 and s + 1 < 18 and (s + 1) % 2 == 0)
        if s + 1 < 18:
            lds_wait_ge(a, C_WREADY, S_RDY, g + 2, V_T + 10, vz)
            if newx: xchunk((s + 1) // 2)
            reads(s + 1)
        for tau in range(3):
            lq.wait(("w", g, tau))
            if tau == 0 and sec == 0 and s % 2 == 0:
                pass
            for t in range(2):
                c = None if s == 0 else ACC(tau, t)
                if sec == 1:
                    mfma(a, ACC(tau, t), XR(t, s), WF(g & 1, tau), c)
                else:
                    mfma(a, ACC(tau, t), WF(g & 1, tau), XR(t, s), c)
            if tau == 2:
                a("v_mov_b32 v%d, %d", V_T + 10, g + 1)
                a("ds_write_b32 v%d, v%d offset:%d", V_W4, V_T + 10, C_APROG)
                lq.issue(("prog", g))
                if sec == 0 and s % 2 == 0 and s // 2 + 3 < 9:
                    x_issue(a, s // 2 + 3)

def cvt_pk(a, d, x, y):
    a("v_cvt_pk_bf16_f32 v%d, v%d, v%d", d, x, y)

def softmax_unit(a, P, out_a, out_b, tmp):
    m, t2, sc = tmp, tmp + 1, tmp + 2
    a("v_max3_f32 v%d, v%d, v%d, v%d", m, P, P + 1, P + 2)
    a("v_max3_f32 v%d, v%d, v%d, v%d", t2, P + 3, P + 4, P + 5)
    a("v_max3_f32 v%d, v%d, v%d, v%d", m, m, P + 6, P + 7)
    a("v_max3_f32 v%d, v%d, v%d, v%d", m, m, t2, P + 8)
    a("v_mov_b32 v%d, v%d", t2, m)
    a("v_permlane16_swap_b32 v%d, v%d", m, t2)
    a("v_max_f32 v%d, v%d, v%d", m, m, t2)
    a("v_mul_f32 v%d, s%d, v%d", m, S_C0 + 3, m)
    for i in range(9):
        a("v_fma_f32 v%d, v%d, s%d, v%d", P + i, P + i, S_C0 + 2, m)
    for i in range(9):
        a("v_exp_f32 v%d, v%d", P + i, P + i)
    a("v_add_f32 v%d, v%d, v%d", sc, P, P + 1)
    a("v_add_f32 v%d, v%d, v%d", t2, P + 2, P + 3)
    a("v_add_f32 v%d, v%d, v%d", sc, sc, P + 4)
    a("v_add_f32 v%d, v%d, v%d", t2, t2, P + 5)
    a("v_add_f32 v%d, v%d, v%d", sc, sc, P + 6)
    a("v_add_f32 v%d, v%d, v%d", t2, t2, P + 7)
    a("v_add_f32 v%d, v%d, v%d", sc, sc, P + 8)
    a("v_add_f32 v%d, v%d, v%d", sc, sc, t2)
    a("v_mov_b32 v%d, v%d", t2, sc)
    a("v_permlane16_swap_b32 v%d, v%d", sc, t2)
    a("v_add_f32 v%d, v%d, v%d", sc, sc, t2)
    a("v_rcp_f32 v%d, v%d", sc, sc)
    for i in range(9):
        a("v_mul_f32 v%d, v%d, v%d", P + i, P + i, sc)
    for i in range(4):
        cvt_pk(a, out_a + i, P + 2 * i, P + 2 * i + 1)
    a("v_cvt_pk_bf16_f32 v%d, v%d, 0", out_b, P + 8)

def pack_kq(a):
    for t in range(2):
        for tau in range(3):
            cvt_pk(a, KP0 + 6 * t + 2 * tau, ACC(tau, t), ACC(tau, t) + 1)
            cvt_pk(a, KP0 + 6 * t + 2 * tau + 1, ACC(tau, t) + 2, ACC(tau, t) + 3)

def phi_frags_read(a, lq, h):
    a("v_lshlrev_b32 v19, 4, v%d", V_L)
    a("v_add_u32 v19, %d, v19", L_OVL)
    for u in range(3):
        a("ds_read_b128 %s, v19 offset:%d", vr(WF(0, u), 4), (h * 3 + u) * 1024)
        lq.issue(("pf", h, u))

def feature_map(a, lq, kside):
    P = ACC0
    D = ACC0 + 12
    PA = WF(1, 0)
    PB = WF(1, 1)
    for i in (1, 2, 3):
        a("v_mov_b32 v%d, 0", PB + i)
    for h in range(2):
        phi_frags_read(a, lq, h)
        for t in range(2):
            if t == 0: lq.drain()
            for u in range(3):
                mfma(a, P + 4 * u, WF(0, u), KP0 + 6 * t + 2 * h, None)
            if kside:
                softmax_unit(a, P, PA, PB, V_T + 10)
                mfma(a, D + 0, PA, SEL + 4, None)
                mfma(a, D + 4, PA, SEL + 2, None)
                mfma(a, D + 8, PB, SEL + 0, None)
                for j in range(3):
                    r = PHT0 + (h * 3 + j) * 4 + 2 * t
                    cvt_pk(a, r, D + 4 * j, D + 4 * j + 1)
                    cvt_pk(a, r + 1, D + 4 * j + 2, D + 4 * j + 3)
            else:
                u0 = PHT0 + 6 * (h * 2 + t)
                softmax_unit(a, P, u0, u0 + 4, V_T + 10)
                a("v_mov_b32 v%d, 0", u0 + 5)

def dbg_dump(a, regs, slot, vt):
    a("s_lshl_b32 s%d, s%d, 3", S_T0 + 6, S_WG)
    a("s_add_u32 s%d, s%d, s%d", S_T0 + 6, S_T0 + 6, S_W)
    a("s_mul_i32 s%d, s%d, %d", S_T0 + 6, S_T0 + 6, 64 * 256)
    a("s_add_u32 s%d, s%d, %d", S_T0 + 6, S_T0 + 6, WS_DBG + slot * 256)
    a("v_lshlrev_b32 v%d, 2, v%d", vt, V_L)
    for i, r in enumerate(regs):
        a("s_nop 7")
        a("buffer_store_dword v%d, v%d, s[%d:%d], s%d offen", r, vt, R_WS, R_WS + 3, S_T0 + 6)
        a("s_add_u32 s%d, s%d, 256", S_T0 + 6, S_T0 + 6)
    a("s_waitcnt vmcnt(0)")

def a_wave(a):
    lq = LQ(a)
    srd(a, R_X, P_X, 2048 * 1152)
    srd(a, R_R4, P_PHI, 32 * 648)
    srd(a, R_R5, P_DBG, 256)
    stamp(a, 0, "real0", real=True); stamp(a, 1, "start")
    a_setup(a)
    phi_raw_issue(a)
    for c in range(3): x_issue(a, c)
    a_setup2(a)
    a("s_mov_b32 s%d, 0x%x", S_C0 + 2, f2u(1.4426950408889634))
    a("s_mov_b32 s%d, 0x%x", S_C0 + 3, f2u(-1.4426950408889634))
    skip = a.label("skip")
    a("s_cmp_lg_u32 s%d, 0", S_W)
    a("s_cbranch_scc1 %s", skip)
    a("v_lshlrev_b32 v10, 2, v%d", V_L)
    a("ds_write_b32 v10, v%d", V_Z)
    a(skip + ":")
    a("s_waitcnt lgkmcnt(0)")
    a("s_barrier")
    stamp(a, 2, "barrier")
    a("s_mov_b32 s%d, 0", S_RDY)
    a("s_waitcnt vmcnt(12)")
    for w in range(4):
        nxt = a.label("pb")
        a("s_cmp_lg_u32 s%d, %d", S_W, w)
        a("s_cbranch_scc1 %s", nxt)
        phi_build(a, w // 3, w % 3)
        if w < 2: phi_build(a, 1, w + 1)
        a(nxt + ":")
    a("s_waitcnt lgkmcnt(0)")
    a("v_mov_b32 v10, 1")
    a("ds_write_b32 v%d, v10 offset:%d", V_W4, C_PHI)
    lq.known_empty(); lq.issue("phiflag")
    stamp(a, 3, "phibuilt", lq)
    gemm_section(a, lq, 0)
    stamp(a, 4, "kgemm", lq)
    if OPT["dbg"] == 1: dbg_dump(a, list(range(ACC0, ACC0 + 24)), 0, 19)
    pack_kq(a)
    a("s_mov_b32 s%d, 0", S_T0 + 7)
    lds_wait_min4_ge(a, C_PHI, S_T0 + 7, 1, V_T + 10, V_Z)
    lq.drain()
    feature_map(a, lq, True)
    if OPT["dbg"] == 1: dbg_dump(a, list(range(PHT0, PHT0 + 24)), 24, 19)
    stamp(a, 5, "kfeat", lq)
    gemm_section(a, lq, 1)
    stamp(a, 6, "vgemm", lq)
    VF = KP0
    for tau in range(3):
        for t in range(2):
            cvt_pk(a, VF + 4 * tau + 2 * t, ACC(tau, t), ACC(tau, t) + 1)
            cvt_pk(a, VF + 4 * tau + 2 * t + 1, ACC(tau, t) + 2, ACC(tau, t) + 3)
    a("v_cmp_eq_u32 vcc, 4, v%d", V_I)
    a("v_mov_b32 v10, 0x3f803f80")
    for i in range(4):
        a("v_cndmask_b32 v%d, v%d, v10, vcc", VF + 4 + i, VF + 4 + i)
    a("v_lshlrev_b32 v10, 4, v%d", V_L)
    a("v_add_u32 v11, s%d, v10", S_C0 + 1)
    for i in range(6):
        a("ds_write_b128 v11, %s offset:%d", vr(PHT0 + 4 * i, 4), i * 1024)
    for i in range(3):
        a("ds_write_b128 v11, %s offset:%d", vr(VF + 4 * i, 4), (6 + i) * 1024)
    team_barrier(a, 1, V_T + 10, V_Z, V_W4)
    lq.known_empty()
    stamp(a, 7, "kvbar", lq)
    a("s_lshr_b32 s%d, s%d, 1", S_T0 + 4, S_W)
    a("s_mul_i32 s%d, s%d, 3072", S_T0 + 5, S_T0 + 4)
    a("s_lshl_b32 s%d, s%d, 11", S_T0 + 6, S_T0 + 4)
    a("s_bitcmp1_b32 s%d, 0", S_W)
    a("s_cselect_b32 s%d, 1024, s%d", S_T0 + 6, S_T0 + 6)
    a("s_add_u32 s%d, s%d, %d", S_T0 + 6, S_T0 + 6, 6144)
    a("v_add_u32 v10, %d, v10", L_XRING)
    a("v_add_u32 v11, s%d, v10", S_T0 + 5)
    a("v_add_u32 v12, s%d, v10", S_T0 + 6)
    FA = WF0
    for wp in range(4):
        b = WF0 if wp % 2 == 0 else PHT0
        for j in range(3):
            a("ds_read_b128 %s, v11 offset:%d", vr(b + 4 * j, 4), wp * 12288 + j * 1024)
            lq.issue(("kx", wp, j))
        a("ds_read_b128 %s, v12 offset:%d", vr(b + 12, 4), wp * 12288)
        lq.issue(("kx", wp))
        if wp % 2 == 1:
            for w2 in (wp - 1, wp):
                b2 = WF0 if w2 % 2 == 0 else PHT0
                lq.wait(("kx", w2))
                for j in range(3):
                    mfma(a, ACC0 + 4 * j, b2 + 4 * j, b2 + 12, None if w2 == 0 else ACC0 + 4 * j)
    cvt_pk(a, 12, ACC0 + 0, ACC0 + 1)
    cvt_pk(a, 13, ACC0 + 2, ACC0 + 3)
    cvt_pk(a, 14, ACC0 + 4, ACC0 + 5)
    cvt_pk(a, 15, ACC0 + 6, ACC0 + 7)
    a("s_lshl_b32 s%d, s%d, 2", S_T0 + 4, S_HP)
    a("s_add_u32 s%d, s%d, s%d", S_T0 + 4, S_T0 + 4, S_W)
    a("s_lshl_b32 s%d, s%d, 4", S_T0 + 5, S_T0 + 4)
    a("s_add_u32 s%d, s%d, s%d", S_T0 + 5, S_T0 + 5, S_TT)
    a("s_lshl_b32 s%d, s%d, 10", S_T0 + 6, S_T0 + 5)
    a("s_lshl_b32 s%d, s%d, 8", S_T0 + 7, S_T0 + 5)
    a("s_add_u32 s%d, s%d, 0x%x", S_T0 + 7, S_T0 + 7, WS_KV9)
    a("v_lshlrev_b32 v10, 4, v%d", V_L)
    a("v_lshlrev_b32 v11, 2, v%d", V_L)
    a("buffer_store_dwordx4 v[12:15], v10, s[%d:%d], s%d offen sc1", R_WS, R_WS + 3, S_T0 + 6)
    a("buffer_store_dword v%d, v11, s[%d:%d], s%d offen sc1", ACC0 + 8, R_WS, R_WS + 3, S_T0 + 7)
    stamp(a, 8, "kvgemm", lq)
    a("s_waitcnt vmcnt(0)")
    get_nonce(a, 16, V_Z, R_R5)
    a("s_lshl_b32 s%d, s%d, 2", S_T0 + 6, S_T0 + 5)
    a("s_add_u32 s%d, s%d, 0x%x", S_T0 + 6, S_T0 + 6, WS_FKV)
    a("v_mov_b32 v17, s%d", S_T0 + 6)
    publish_flag(a, 17, 16)
    stamp(a, 9, "kvpub", lq)
    gemm_section(a, lq, 2)
    stamp(a, 10, "qgemm", lq)
    pack_kq(a)
    lq.drain()
    feature_map(a, lq, False)
    a("v_mov_b32 v%d, 0", PHT0 + 24 - 1)
    stamp(a, 11, "qfeat", lq)
    a("s_lshl_b32 s%d, s%d, 2", S_T0 + 4, S_HP)
    a("s_add_u32 s%d, s%d, s%d", S_T0 + 4, S_T0 + 4, S_W)
    a("s_lshl_b32 s%d, s%d, 6", S_T0 + 5, S_T0 + 4)
    a("s_add_u32 s%d, s%d, 0x%x", S_T0 + 5, S_T0 + 5, WS_FKV)
    a("v_lshlrev_b32 v10, 2, v%d", V_L)
    a("v_add_u32 v11, s%d, v10", S_T0 + 5)
    poll_flags(a, 11, 12, 16)
    stamp(a, 12, "kvpoll", lq)
    a("s_lshl_b32 s%d, s%d, 14", S_T0 + 5, S_T0 + 4)
    a("s_lshl_b32 s%d, s%d, 12", S_T0 + 6, S_T0 + 4)
    a("s_add_u32 s%d, s%d, 0x%x", S_T0 + 6, S_T0 + 6, WS_KV9)
    a("v_lshlrev_b32 v11, 4, v%d", V_L)
    PA = X0
    PB = X0 + 64
    for p in range(16):
        a("s_add_u32 s%d, s%d, %d", S_T0 + 7, S_T0 + 5, p * 1024)
        a("buffer_load_dwordx4 %s, v11, s[%d:%d], s%d offen sc1", vr(PA + 4 * p, 4), R_WS, R_WS + 3, S_T0 + 7)
        a("buffer_load_dword v%d, v10, s[%d:%d], s%d offen offset:%d sc1", PB + p, R_WS, R_WS + 3, S_T0 + 6, p * 256)
    for p in range(16):
        a("s_waitcnt vmcnt(%d)", 2 * (15 - p))
        mfma(a, ACC0 + 0, SEL + 4, PA + 4 * p, None if p == 0 else ACC0 + 0)
        mfma(a, ACC0 + 4, SEL + 2, PA + 4 * p, None if p == 0 else ACC0 + 4)
        if p == 1: a("v_add_f32 v12, v%d, v%d", PB, PB + 1)
        if p > 1: a("v_add_f32 v12, v12, v%d", PB + p)
    cvt_pk(a, 16, ACC0 + 0, ACC0 + 1)
    cvt_pk(a, 17, ACC0 + 2, ACC0 + 3)
    cvt_pk(a, 18, ACC0 + 4, ACC0 + 5)
    cvt_pk(a, 19, ACC0 + 6, ACC0 + 7)
    a("v_cvt_pk_bf16_f32 v12, v12, 0")
    L_RECA, L_RECB = L_OVL, L_OVL + 4096
    a("s_lshl_b32 s%d, s%d, 10", S_T0 + 4, S_W)
    a("s_add_u32 s%d, s%d, %d", S_T0 + 4, S_T0 + 4, L_RECA)
    a("v_add_u32 v11, s%d, v11", S_T0 + 4)
    a("s_lshl_b32 s%d, s%d, 8", S_T0 + 4, S_W)
    a("s_add_u32 s%d, s%d, %d", S_T0 + 4, S_T0 + 4, L_RECB)
    a("v_add_u32 v10, s%d, v10", S_T0 + 4)
    a("ds_write_b128 v11, v[16:19]")
    a("ds_write_b32 v10, v12")
    stamp(a, 13, "kvsum", lq)
    team_barrier(a, 2, V_T + 10, V_Z, V_W4)
    lq.known_empty()
    stamp(a, 14, "recbar", lq)
    AF = WF0
    a("v_lshrrev_b32 v10, 2, v%d", V_I)
    a("v_and_b32 v11, 3, v%d", V_I)
    a("v_mul_u32_u24 v12, 3, v10")
    a("v_add_u32 v12, v12, v11")
    a("v_cmp_eq_u32 s[%d:%d], 3, v11", S_T0 + 4, S_T0 + 5)
    def rec_read(h, X, vcol_set):
        a("v_lshlrev_b32 v15, 4, v%d", V_G)
        a("v_add_u32 v15, v15, v%d", vcol_set)
        a("v_lshlrev_b32 v16, 4, v15")
        a("v_add_u32 v16, %d, v16", L_RECA)
        a("v_lshlrev_b32 v15, 2, v15")
        a("v_add_u32 v15, %d, v15", L_RECB)
        a("ds_read_b128 %s, v16", vr(AF + 4 * (h * 2 + X), 4))
        a("ds_read_b32 v%d, v15", ACC0 + 4 * (h * 2 + X))
        for i in (1, 2, 3):
            a("v_mov_b32 v%d, 0", ACC0 + 4 * (h * 2 + X) + i)
    a("v_mov_b32 v13, %d", 64 + 4)
    a("v_cndmask_b32 v14, v12, v13, s[%d:%d]", S_T0 + 4, S_T0 + 5)
    rec_read(0, 0, 14)
    a("v_add_u32 v14, %d, v12", 128 - 2)
    a("v_add_u32 v13, %d, v12", 192 + 2)
    a("v_cmp_gt_u32 vcc, 2, v12")
    a("v_cndmask_b32 v14, v14, v13, vcc")
    a("v_mov_b32 v13, %d", 192 + 4)
    a("v_cndmask_b32 v14, v14, v13, s[%d:%d]", S_T0 + 4, S_T0 + 5)
    rec_read(1, 0, 14)
    a("v_and_b32 v13, 1, v11")
    a("v_lshlrev_b32 v14, 1, v10")
    a("v_add_u32 v14, v14, v13")
    a("v_add_u32 v14, 12, v14")
    a("v_add_u32 v13, %d, v10", 64 - 2)
    a("v_cmp_gt_u32 vcc, 2, v10")
    a("v_cndmask_b32 v14, v13, v14, vcc")
    rec_read(0, 1, 14)
    a("v_add_u32 v14, %d, v10", 128 + 12 - 2)
    a("v_and_b32 v13, 1, v11")
    a("v_lshlrev_b32 v15, 1, v10")
    a("v_add_u32 v13, v13, v15")
    a("v_add_u32 v13, %d, v13", 128 + 14 - 4 - 2)
    a("v_cndmask_b32 v14, v13, v14, vcc")
    rec_read(1, 1, 14)
    a("s_waitcnt lgkmcnt(0)")
    OT = X0
    for h in range(2):
        for t in range(2):
            u0 = PHT0 + 6 * (h * 2 + t)
            for X in range(2):
                d = OT + 4 * ((h * 2 + X) * 2 + t)
                mfma(a, d, AF + 4 * (h * 2 + X), u0, None)
                mfma(a, d, ACC0 + 4 * (h * 2 + X), u0 + 4, d)
    def ot(h, X, t): return OT + 4 * ((h * 2 + X) * 2 + t)
    for t in range(2):
        for h in range(2):
            den = 10 + h
            a("v_add_f32 v%d, 0x%x, v%d", den, f2u(1e-6), ot(h, 0, t) + 3)
            a("v_rcp_f32 v%d, v%d", den, den)
            for r in range(3):
                a("v_mul_f32 v%d, v%d, v%d", ot(h, 0, t) + r, ot(h, 0, t) + r, den)
            for r in range(2):
                a("v_mul_f32 v%d, v%d, v%d", ot(h, 1, t) + r, ot(h, 1, t) + r, den)
        o = WF0 + 16 + 4 * t
        cvt_pk(a, o + 0, ot(0, 0, t), ot(0, 0, t) + 1)
        cvt_pk(a, o + 1, ot(0, 0, t) + 2, ot(0, 1, t))
        cvt_pk(a, o + 2, ot(1, 0, t), ot(1, 0, t) + 1)
        cvt_pk(a, o + 3, ot(1, 0, t) + 2, ot(1, 1, t))
    a("v_cmp_gt_u32 vcc, 2, v%d", V_G)
    a("v_cndmask_b32 v12, v%d, v%d, vcc", ot(1, 1, 0) + 1, ot(0, 1, 0) + 1)
    a("v_cndmask_b32 v13, v%d, v%d, vcc", ot(1, 1, 1) + 1, ot(0, 1, 1) + 1)
    cvt_pk(a, 12, 12, 13)
    a("s_lshl_b32 s%d, s%d, 2", S_T0 + 4, S_TT)
    a("s_add_u32 s%d, s%d, s%d", S_T0 + 4, S_T0 + 4, S_W)
    a("s_lshl_b32 s%d, s%d, 4", S_T0 + 5, S_T0 + 4)
    a("s_add_u32 s%d, s%d, s%d", S_T0 + 5, S_T0 + 5, S_HP)
    a("s_lshl_b32 s%d, s%d, 11", S_T0 + 6, S_T0 + 5)
    a("s_add_u32 s%d, s%d, 0x%x", S_T0 + 6, S_T0 + 6, WS_O)
    a("s_lshl_b32 s%d, s%d, 8", S_T0 + 7, S_T0 + 5)
    a("s_add_u32 s%d, s%d, 0x%x", S_T0 + 7, S_T0 + 7, WS_O9)
    a("v_lshlrev_b32 v10, 4, v%d", V_L)
    a("v_lshlrev_b32 v11, 2, v%d", V_L)
    for t in range(2):
        a("buffer_store_dwordx4 %s, v10, s[%d:%d], s%d offen offset:%d sc1", vr(WF0 + 16 + 4 * t, 4), R_WS, R_WS + 3, S_T0 + 6, t * 1024)
    a("buffer_store_dword v12, v11, s[%d:%d], s%d offen sc1", R_WS, R_WS + 3, S_T0 + 7)
    a("s_lshl_b32 s%d, s%d, 2", S_T0 + 6, S_T0 + 5)
    a("s_add_u32 s%d, s%d, 0x%x", S_T0 + 6, S_T0 + 6, WS_FO)
    a("v_mov_b32 v17, s%d", S_T0 + 6)
    stamp(a, 15, "p2a", lq)
    publish_flag(a, 17, 16)
    stamp(a, 16, "opub", lq)
    a("s_and_b32 s%d, s%d, 1", S_T0 + 4, S_HP)
    a("s_lshl_b32 s%d, s%d, 1", S_T0 + 4, S_T0 + 4)
    a("s_lshr_b32 s%d, s%d, 1", S_T0 + 5, S_W)
    a("s_add_u32 s%d, s%d, s%d", S_C0 + 4, S_T0 + 4, S_T0 + 5)
    a("s_lshl_b32 s%d, s%d, 2", S_T0 + 4, S_TT)
    a("s_add_u32 s%d, s%d, s%d", S_T0 + 4, S_T0 + 4, S_C0 + 4)
    a("s_lshl_b32 s%d, s%d, 6", S_T0 + 5, S_T0 + 4)
    a("s_add_u32 s%d, s%d, 0x%x", S_T0 + 5, S_T0 + 5, WS_FO)
    a("v_add_u32 v12, s%d, v11", S_T0 + 5)
    poll_flags(a, 12, 13, 16)
    stamp(a, 17, "opoll", lq)
    a("s_lshl_b32 s%d, s%d, 15", S_T0 + 5, S_T0 + 4)
    a("s_add_u32 s%d, s%d, 0x%x", S_T0 + 5, S_T0 + 5, WS_O)
    a("s_lshl_b32 s%d, s%d, 12", S_T0 + 6, S_T0 + 4)
    a("s_add_u32 s%d, s%d, 0x%x", S_T0 + 6, S_T0 + 6, WS_O9)
    N9 = ACC0
    for p in range(16):
        a("s_add_u32 s%d, s%d, %d", S_T0 + 7, S_T0 + 5, p * 2048)
        for t in range(2):
            a("buffer_load_dwordx4 %s, v10, s[%d:%d], s%d offen offset:%d sc1", vr(XR(t, p), 4), R_WS, R_WS + 3, S_T0 + 7, t * 1024)
    for p in range(16):
        a("buffer_load_dword v%d, v11, s[%d:%d], s%d offen offset:%d sc1", N9 + p, R_WS, R_WS + 3, S_T0 + 6, p * 256)
    a("s_mov_b32 s%d, 0", S_T0 + 7)
    lds_wait_ge(a, C_WOREADY, S_T0 + 7, 1, 13, V_Z)
    a("v_lshrrev_b32 v12, 1, v%d", V_G)
    a("v_lshlrev_b32 v12, 4, v12")
    a("v_and_b32 v13, 1, v%d", V_G)
    a("v_lshlrev_b32 v13, 2, v13")
    a("v_add_u32 v12, v12, v13")
    a("v_lshrrev_b32 v13, 2, v%d", V_I)
    a("v_add_u32 v12, v12, v13")
    a("v_mul_u32_u24 v12, 160, v12")
    a("v_and_b32 v13, 3, v%d", V_I)
    a("v_lshlrev_b32 v13, 3, v13")
    a("v_add_u32 v12, v12, v13")
    a("v_add_u32 v12, %d, v12", L_WO)
    a("v_add_u32 v14, 128, v12")
    a("s_and_b32 s%d, s%d, 1", S_T0 + 7, S_W)
    a("s_lshl_b32 s%d, s%d, 6", S_T0 + 7, S_T0 + 7)
    a("v_add_u32 v12, s%d, v12", S_T0 + 7)
    a("v_add_u32 v13, %d, v12", 9 * 5120)
    a("v_add_u32 v15, %d, v14", 9 * 5120)
    stamp(a, 18, "woready", lq)
    O3 = PHT0
    def wo_reads(s):
        va, vb = (12, 14) if s < 9 else (13, 15)
        off = (s % 9) * 5120
        b = WF(s & 1, 0)
        for k2, (v, o) in enumerate([(va, 0), (va, 32), (vb, 0)]):
            a("ds_read_b64_tr_b16 v[%d:%d], v%d offset:%d", b + 4 * k2, b + 4 * k2 + 1, v, off + o)
            lq.issue(("o", s, k2, 0))
            a("ds_read_b64_tr_b16 v[%d:%d], v%d offset:%d", b + 4 * k2 + 2, b + 4 * k2 + 3, v, off + o + 1280)
            lq.issue(("o", s, k2))
    lq.known_empty()
    wo_reads(0)
    t4 = a.label("t4");
    for s in range(18):
        if s + 1 < 18: wo_reads(s + 1)
        if s < 16:
            a("s_waitcnt vmcnt(%d)", 2 * (15 - s) + 16)
        if s == 16:
            a("s_waitcnt vmcnt(0)")
            for sp in range(2):
                for i in range(4):
                    lo, hi = N9 + 8 * sp + 2 * i, N9 + 8 * sp + 2 * i + 1
                    a("v_perm_b32 v%d, v%d, v%d, s%d", XR(0, 16 + sp) + i, hi, lo, S_C0 + 5)
                    a("v_perm_b32 v%d, v%d, v%d, s%d", XR(1, 16 + sp) + i, hi, lo, S_C0 + 6)
        b = WF(s & 1, 0)
        for k2 in range(2):
            lq.wait(("o", s, k2))
            for t in range(2):
                d = O3 + 4 * (2 * k2 + t)
                mfma(a, d, b + 4 * k2, XR(t, s), None if s == 0 else d)
        lq.wait(("o", s, 2))
        l1 = a.label("odd"); l2 = a.label("join")
        a("s_bitcmp1_b32 s%d, 0", S_W)
        a("s_cbranch_scc1 %s", l1)
        mfma(a, O3 + 16, b + 8, XR(0, s), None if s == 0 else O3 + 16)
        a("s_branch %s", l2)
        a(l1 + ":")
        mfma(a, O3 + 16, b + 8, XR(1, s), None if s == 0 else O3 + 16)
        a(l2 + ":")
    stamp(a, 19, "p3", lq)
    a("s_lshl_b32 s%d, s%d, 7", S_T0 + 4, S_TT)
    a("s_lshl_b32 s%d, s%d, 5", S_T0 + 5, S_C0 + 4)
    a("s_add_u32 s%d, s%d, s%d", S_T0 + 4, S_T0 + 4, S_T0 + 5)
    a("s_mul_i32 s%d, s%d, 2304", S_T0 + 4, S_T0 + 4)
    a("s_lshr_b32 s%d, s%d, 1", S_T0 + 5, S_HP)
    a("s_mul_i32 s%d, s%d, 144", S_T0 + 5, S_T0 + 5)
    a("s_add_u32 s%d, s%d, s%d", S_T0 + 4, S_T0 + 4, S_T0 + 5)
    a("s_and_b32 s%d, s%d, 1", S_T0 + 5, S_W)
    a("s_lshl_b32 s%d, s%d, 6", S_T0 + 6, S_T0 + 5)
    a("s_add_u32 s%d, s%d, s%d", S_T0 + 6, S_T0 + 6, S_T0 + 4)
    a("s_mul_i32 s%d, s%d, %d", S_T0 + 7, S_T0 + 5, 16 * 2304)
    a("s_add_u32 s%d, s%d, s%d", S_T0 + 7, S_T0 + 7, S_T0 + 4)
    a("s_mul_i32 s%d, s%d, 1536", S_T0 + 5, S_W)
    a("s_add_u32 s%d, s%d, %d", S_T0 + 5, S_T0 + 5, L_OVL)
    a("v_lshlrev_b32 v12, 6, v%d", V_I)
    a("v_lshlrev_b32 v13, 3, v%d", V_G)
    a("v_add_u32 v12, v12, v13")
    a("v_add_u32 v12, s%d, v12", S_T0 + 5)
    a("v_lshlrev_b32 v13, 4, v%d", V_L)
    a("v_add_u32 v13, s%d, v13", S_T0 + 5)
    a("v_lshrrev_b32 v14, 2, v%d", V_L)
    a("v_mul_u32_u24 v14, 2304, v14")
    a("v_and_b32 v15, 3, v%d", V_L)
    a("v_lshlrev_b32 v15, 4, v15")
    a("v_add_u32 v14, v14, v15")
    for t in range(2):
        for k2 in range(2):
            d = O3 + 4 * (2 * k2 + t)
            cvt_pk(a, 16, d, d + 1)
            cvt_pk(a, 17, d + 2, d + 3)
            a("ds_write_b64 v12, v[16:17] offset:%d", k2 * 32)
        a("s_waitcnt lgkmcnt(0)")
        a("ds_read_b128 %s, v13", vr(WF0 + 4 * t, 4))
        a("s_waitcnt lgkmcnt(0)")
        a("s_add_u32 s%d, s%d, %d", S_T0 + 5, S_T0 + 6, t * 16 * 2304)
        a("buffer_store_dwordx4 %s, v14, s[%d:%d], s%d offen", vr(WF0 + 4 * t, 4), R_OUT, R_OUT + 3, S_T0 + 5)
    cvt_pk(a, 16, O3 + 16, O3 + 17)
    cvt_pk(a, 17, O3 + 18, O3 + 19)
    a("v_mul_u32_u24 v14, 2304, v%d", V_I)
    a("v_lshlrev_b32 v15, 3, v%d", V_G)
    a("v_add_u32 v14, v14, v15")
    a("s_mov_b32 exec_hi, 0")
    a("buffer_store_dwordx2 v[16:17], v14, s[%d:%d], s%d offen offset:128", R_OUT, R_OUT + 3, S_T0 + 7)
    a("s_mov_b32 exec_hi, -1")
    a("s_waitcnt vmcnt(0)")
    stamp(a, 20, "end", lq)
    stamp(a, 21, "realend", lq, real=True)
    stamp_dump(a, role="A")

def magic_div(a, dst, src, d, maxv):
    for sh in range(16, 24):
        mul = (1 << sh) // d + 1
        if all((p * mul) >> sh == p // d for p in range(maxv)) and mul * maxv < (1 << 32) and mul < (1 << 24):
            a("v_mul_u32_u24 v%d, %d, v%d", dst, mul, src)
            a("v_lshrrev_b32 v%d, %d, v%d", dst, sh, dst)
            return
    raise ValueError

def slot_to_row(a, dst, slot, tmp):
    a("v_lshrrev_b32 v%d, 2, v%d", tmp, slot)
    a("v_lshrrev_b32 v%d, 3, v%d", dst, slot)
    a("v_xor_b32 v%d, v%d, v%d", tmp, tmp, dst)
    a("v_and_b32 v%d, 1, v%d", tmp, tmp)
    a("v_mul_u32_u24 v%d, 12, v%d", tmp, tmp)
    a("v_xor_b32 v%d, v%d, v%d", dst, slot, tmp)

def publish_nonce(a):
    nn = a.label("nn")
    a("s_cmp_lg_u32 s%d, 0", S_WG)
    a("s_cbranch_scc1 %s", nn)
    a("s_memrealtime s[%d:%d]", S_T0 + 2, S_T0 + 3)
    a("s_waitcnt lgkmcnt(0)")
    a("s_or_b32 s%d, s%d, 1", S_T0 + 2, S_T0 + 2)
    a("v_mov_b32 v2, s%d", S_T0 + 2)
    a("v_mov_b32 v3, 0")
    a("s_mov_b64 exec, 1")
    a("buffer_store_dword v2, v3, s[%d:%d], 0 offen sc1", R_R5, R_R5 + 3)
    a("s_mov_b64 exec, -1")
    a(nn + ":")

def loader_wave(a):
    srd(a, R_X, P_WQKV, 576 * 3456)
    srd(a, R_R4, P_WO, 576 * 1152)
    srd(a, R_R5, P_DBG, 256)
    stamp(a, 0, "real0", real=True); stamp(a, 1, "start")
    VA = 8
    for i in range(3):
        a("v_add_u32 v2, %d, v0", 64 * i)
        magic_div(a, 3, 2, 6, 192)
        a("v_mul_u32_u24 v4, 6, v3")
        a("v_sub_u32 v4, v2, v4")
        slot_to_row(a, 5, 3, 6)
        a("v_mul_u32_u24 v5, 3456, v5")
        a("v_lshlrev_b32 v6, 4, v4")
        a("v_add_u32 v5, v5, v6")
        a("v_mov_b32 v6, 0x%x", OOB)
        a("v_cmp_gt_u32 vcc, 5, v4")
        a("v_cndmask_b32 v%d, v6, v5, vcc", VA + i)
    a("s_mul_i32 s%d, s%d, 72", S_C0, S_HP)
    secbase = [1152, 2304, 0]
    def issue(g):
        sec, s = divmod(g, 18)
        a("s_add_u32 s%d, s%d, %d", S_T0, S_C0, secbase[sec] + s * 32 * 3456)
        for i in range(3):
            a("s_mov_b32 m0, %d", L_WRING + (g % NS) * 3072 + i * 1024)
            a("buffer_load_dwordx4 v%d, s[%d:%d], s%d offen lds", VA + i, R_X, R_X + 3, S_T0)
    stamp(a, 2, "l_addr")
    for g in range(NS): issue(g)
    stamp(a, 3, "l_issued")
    publish_nonce(a)
    for i in range(5):
        a("v_add_u32 v2, %d, v0", 64 * i)
        magic_div(a, 3, 2, 10, 320)
        a("v_mul_u32_u24 v4, 10, v3")
        a("v_sub_u32 v4, v2, v4")
        slot_to_row(a, 5, 3, 6)
        a("v_lshrrev_b32 v6, 3, v5")
        a("v_and_b32 v7, 7, v5")
        a("v_and_b32 v22, 3, v7")
        a("v_mul_u32_u24 v23, 3, v6")
        a("v_add_u32 v23, v23, v22")
        a("v_lshlrev_b32 v24, 1, v6")
        a("v_add_u32 v24, 12, v24")
        a("v_min_u32 v24, 17, v24")
        a("v_add_u32 v25, 12, v6")
        a("v_cmp_eq_u32 vcc, 3, v6")
        a("v_mov_b32 v26, 16")
        a("v_cndmask_b32 v25, v25, v26, vcc")
        a("v_cmp_lt_u32 vcc, 3, v7")
        a("v_cndmask_b32 v24, v24, v25, vcc")
        a("v_cmp_eq_u32 vcc, 3, v22")
        a("v_cndmask_b32 v23, v23, v24, vcc")
        a("v_lshrrev_b32 v24, 2, v7")
        a("v_mul_u32_u24 v24, 18, v24")
        a("v_add_u32 v23, v23, v24")
        a("v_mul_u32_u24 v23, 1152, v23")
        a("v_lshlrev_b32 v24, 4, v4")
        a("v_add_u32 v23, v23, v24")
        a("v_mov_b32 v26, 0x%x", OOB)
        a("v_cmp_gt_u32 vcc, 9, v4")
        a("v_cndmask_b32 v%d, v26, v23, vcc", 12 + i)
        a("v_lshlrev_b32 v23, 1, v6")
        a("v_add_u32 v23, 13, v23")
        a("v_lshrrev_b32 v25, 1, v6")
        a("v_mul_u32_u24 v25, 16, v25")
        a("v_add_u32 v23, v23, v25")
        a("v_mul_u32_u24 v25, 36, v7")
        a("v_add_u32 v23, v23, v25")
        a("v_mul_u32_u24 v23, 1152, v23")
        a("v_add_u32 v23, v23, v24")
        a("v_cndmask_b32 v%d, v26, v23, vcc", 17 + i)
    a("v_mov_b32 v30, 0")
    a("s_barrier")
    a("s_mov_b32 s%d, 0", S_RDY)
    DELTA = 3
    issued = NS
    total = 54
    def publish(n):
        a("v_mov_b32 v2, %d", n)
        a("ds_write_b32 v30, v2 offset:%d", C_WREADY)
    for s in range(total):
        n = 3 * (issued - s - 1)
        a("s_waitcnt vmcnt(%d)", min(n, 63))
        publish(s + 1)
        if s in (0, 5, 17, 35, 53): stamp(a, {0: 4, 5: 5, 17: 6, 35: 7, 53: 8}[s], "l_pub%d" % s)
        nxt = s - DELTA + NS + 0
        if s >= DELTA and issued < total and nxt == issued:
            lds_wait_min4_ge(a, C_APROG, S_RDY, issued - NS + 1, 4, 30)
            issue(issued); issued += 1
    while issued < total:
        raise AssertionError
    lds_wait_min4_ge(a, C_APROG, S_RDY, total, 4, 30)
    stamp(a, 9, "l_aprog54")
    a("s_lshr_b32 s%d, s%d, 1", S_C0 + 1, S_HP)
    a("s_mul_i32 s%d, s%d, 144", S_C0 + 1, S_C0 + 1)
    cnt = 0
    for s in range(18):
        if s < 16:
            a("s_add_u32 s%d, s%d, %d", S_T0, S_C0 + 1, s * 36 * 1152)
        else:
            a("s_add_u32 s%d, s%d, %d", S_T0, S_C0 + 1, (s - 16) * 8 * 36 * 1152)
        for i in range(5):
            a("s_mov_b32 m0, %d", L_WO + s * 5120 + i * 1024)
            a("buffer_load_dwordx4 v%d, s[%d:%d], s%d offen lds", (12 if s < 16 else 17) + i, R_R4, R_R4 + 3, S_T0)
            cnt += 1
        if s >= 6: a("s_waitcnt vmcnt(30)")
    a("s_waitcnt vmcnt(0)")
    a("v_mov_b32 v2, 1")
    a("ds_write_b32 v30, v2 offset:%d", C_WOREADY)
    a("s_waitcnt lgkmcnt(0)")
    stamp(a, 10, "l_woready")
    stamp(a, 21, "realend", real=True)
    stamp_dump(a)


S_CH, S_RB = S_C0, S_C0 + 1
CS = 4160
U_OFF = 4 * CS
ROW = 272

def cmul(a, d, x, e):
    a("v_pk_mul_f32 v[%d:%d], v[%d:%d], v[%d:%d] op_sel_hi:[1,0]", d, d + 1, x, x + 1, e, e + 1)
    a("v_pk_fma_f32 v[%d:%d], v[%d:%d], v[%d:%d], v[%d:%d] op_sel:[1,1,0] op_sel_hi:[0,1,1] neg_lo:[1,0,0]",
      d, d + 1, x, x + 1, e, e + 1, d, d + 1)

def cexp(a, d, p, A2, W, t):
    a("v_mul_f32 v%d, 0x%x, v%d", t, f2u(float(p)), A2)
    a("v_mul_f32 v%d, 0x%x, v%d", t + 1, f2u(float(p)), W)
    a("v_exp_f32 v%d, v%d", t, t)
    a("v_fract_f32 v%d, v%d", t + 1, t + 1)
    a("v_cos_f32 v%d, v%d", t + 2, t + 1)
    a("v_sin_f32 v%d, v%d", t + 1, t + 1)
    a("v_mul_f32 v%d, v%d, v%d", d, t, t + 2)
    a("v_mul_f32 v%d, v%d, v%d", d + 1, t, t + 1)

def exp_bf16(a, d, x):
    a("v_mul_f32 v%d, 0x%x, v%d", d, f2u(1.4426950408889634), x)
    a("v_exp_f32 v%d, v%d", d, d)
    a("v_cvt_pk_bf16_f32 v%d, v%d, v%d", d, d, d)
    a("v_lshlrev_b32 v%d, 16, v%d", d, d)

def channel_wave(a):
    lq = LQ(a)
    srd(a, R_X, P_LOGA, 576 * 256)
    srd(a, R_WQ, P_AIM, 576 * 256)
    srd(a, R_R4, P_CRE, 576 * 256)
    srd(a, R_R5, P_CIM, 576 * 256)
    srd(a, 32, P_LDT, 1152)
    srd(a, R_OUT, P_D, 1152)
    a("s_lshl_b32 s%d, s%d, 8", S_T0, S_CH)
    a("v_lshlrev_b32 v3, 2, v0")
    for i, r in enumerate((R_X, R_WQ, R_R4, R_R5)):
        a("buffer_load_dword v%d, v3, s[%d:%d], s%d offen", 10 + i, r, r + 3, S_T0)
    a("s_lshl_b32 s%d, s%d, 1", S_T0 + 1, S_CH)
    a("v_mov_b32 v4, 0")
    a("buffer_load_ushort v14, v4, s[32:35], s%d offen", S_T0 + 1)
    a("buffer_load_ushort v15, v4, s[%d:%d], s%d offen", R_OUT, R_OUT + 3, S_T0 + 1)
    srd(a, R_R5, P_DBG, 256)
    stamp(a, 0, "real0", real=True); stamp(a, 1, "start")
    a("v_and_b32 v%d, 15, v0", V_I)
    a("v_lshrrev_b32 v%d, 4, v0", V_G)
    VW = 5
    VR = 6
    a("v_add_u32 v%d, s%d, v3", VW, S_RB)
    a("v_mul_u32_u24 v%d, %d, v%d", VR, ROW, V_I)
    a("v_lshlrev_b32 v7, 4, v%d", V_G)
    a("v_add_u32 v%d, v%d, v7", VR, VR)
    a("v_add_u32 v%d, s%d, v%d", VR, S_RB, VR)
    a("s_barrier")
    a("s_waitcnt vmcnt(0)")
    stamp(a, 2, "b_params")
    DT, DSK = 24, 15
    a("v_lshlrev_b32 v14, 16, v14")
    exp_bf16(a, DT, 14)
    a("v_lshlrev_b32 v%d, 16, v15", DSK)
    for h in range(2):
        b = 16 + 4 * h
        for i in range(4):
            if h == 0: a("v_lshlrev_b32 v%d, 16, v%d", b + i, 10 + i)
            else: a("v_and_b32 v%d, 0xffff0000, v%d", b + i, 10 + i)
        exp_bf16(a, 26, b)
        a("v_mul_f32 v%d, v26, v%d", b, DT)
        a("v_mul_f32 v%d, 0x%x, v%d", b, f2u(-1.4426950408889634), b)
        a("v_mul_f32 v%d, v%d, v%d", b + 1, b + 1, DT)
        a("v_mul_f32 v%d, 0x%x, v%d", b + 1, f2u(0.15915494309189535), b + 1)
        a("v_mul_f32 v%d, v%d, v%d", b + 2, b + 2, DT)
        a("v_mul_f32 v%d, v%d, v%d", b + 3, b + 3, DT)
        a("v_add_f32 v%d, v%d, v%d", b + 2, b + 2, b + 2)
        a("v_add_f32 v%d, v%d, v%d", b + 3, b + 3, b + 3)
    DY, DX, DZ = 28, 32, 36
    for i in range(12): a("v_mov_b32 v%d, 0", DY + i)
    A2, W, CC = 16, 17, 18
    E1, E2, E4, E8, E128, E256, E512 = 40, 42, 44, 46, 48, 50, 52
    T = 54
    PK = 60
    P0 = 64
    def put(row, x, conj=False):
        a("v_cvt_pk_bf16_f32 v%d, v%d, %sv%d", PK + (row & 1), x, "-" if conj else "", x + 1)
        a("ds_write_b32 v%d, v%d offset:%d", VW, PK + (row & 1), row * ROW)
    RY, RX, RZ = 16, 32, 48
    def rowY(al): return RY + 8 * (al // 128) + al % 128
    def rowX(al):
        if al >= 1024:
            i = (al - 1024) // 128
            return RX + 4 * (i % 4) + i // 4
        i = (al - 512) // 128
        return RX + 4 * i + 2 + (al % 128) // 4
    def rowZ(al): return RZ + 4 * ((al - 256) // 128) + (al % 128) // 2
    lp = a.label("khalf")
    a("s_mov_b32 s%d, 0", S_T0 + 2)
    a(lp + ":")
    cexp(a, E1, 1, A2, W, T)
    cexp(a, E8, 8, A2, W, T + 3)
    cexp(a, E128, 128, A2, W, T)
    cmul(a, E2, E1, E1); cmul(a, E256, E128, E128)
    cmul(a, E4, E2, E2); cmul(a, E512, E256, E256)
    stamp(a, 8, "k_anch")
    a("v_mov_b32 v%d, 0x3f80", PK)
    a("ds_write_b32 v%d, v%d offset:0", VW, PK)
    put(1, E8, True)
    x = E8
    for j in range(2, 16):
        d = P0 + 2 * (j & 1)
        cmul(a, d, x, E8); put(j, d, True); x = d
    stamp(a, 9, "k_beta")
    R1 = P0 + 4
    put(rowY(0), CC)
    x = CC
    for r in range(1, 8):
        d = R1 + 2 * r
        cmul(a, d, x, E1); put(rowY(r), d); x = d
    for r in range(8):
        src = CC if r == 0 else R1 + 2 * r
        cmul(a, P0, src, E128); put(rowY(128 + r), P0)
    R2 = P0 + 4
    cmul(a, R2, CC, E256); put(rowZ(256), R2)
    for r in range(1, 4):
        cmul(a, R2 + 2 * r, R2 + 2 * r - 2, E2); put(rowZ(256 + 2 * r), R2 + 2 * r)
    for r in range(4):
        cmul(a, P0, R2 + 2 * r, E128); put(rowZ(384 + 2 * r), P0)
    XA, XB = R2 + 8, R2 + 10
    X512 = R2 + 12
    cmul(a, X512, R2, E256); put(rowX(512), X512); put(RZ + 8, X512)
    cmul(a, XA, X512, E4); put(rowX(516), XA)
    s0, s1 = X512, XA
    for i in range(1, 4):
        d0, d1 = P0 + 4 * (i & 1) + 20, P0 + 4 * (i & 1) + 22
        cmul(a, d0, s0, E128); put(rowX(512 + 128 * i), d0)
        cmul(a, d1, s1, E128); put(rowX(512 + 128 * i + 4), d1)
        s0, s1 = d0, d1
    x = P0 + 2
    cmul(a, x, X512, E512); put(rowX(1024), x)
    for i in range(1, 9):
        d = P0 if x == P0 + 2 else P0 + 2
        cmul(a, d, x, E128)
        put(rowX(1024 + 128 * i) if i < 8 else RZ + 9, d); x = d
    stamp(a, 10, "k_alpha")
    FR = 96
    for s in range(4):
        for t in range(4):
            a("ds_read_b128 %s, v%d offset:%d", vr(FR + 16 * s + 4 * t, 4), VR, t * 16 * ROW + 64 * s)
    for s in range(4):
        a("s_waitcnt lgkmcnt(%d)", 4 * (3 - s))
        for t, D in enumerate((DY, DX, DZ)):
            mfma(a, D, FR + 16 * s + 4 * (t + 1), FR + 16 * s, D)
    for i in range(4): a("v_mov_b32 v%d, v%d", 16 + i, 20 + i)
    a("s_add_u32 s%d, s%d, 1", S_T0 + 2, S_T0 + 2)
    a("s_cmp_lt_u32 s%d, 2", S_T0 + 2)
    a("s_cbranch_scc1 %s", lp)
    stamp(a, 3, "b_kgen")
    get_nonce(a, 10, 4, R_R5)
    a("s_lshr_b32 s%d, s%d, 6", S_T0 + 4, S_CH)
    a("s_lshl_b32 s%d, s%d, 6", S_T0 + 4, S_T0 + 4)
    a("s_add_u32 s%d, s%d, 0x%x", S_T0 + 4, S_T0 + 4, WS_FU)
    a("v_add_u32 v10, s%d, v3", S_T0 + 4)
    a("s_nop 7")
    VA = 7
    a("v_lshlrev_b32 v11, 4, v0")
    a("v_sub_u32 v%d, s%d, v11", VA, S_RB)
    a("v_add_u32 v%d, %d, v%d", VA, 3 * CS + 1008, VA)
    N0, N1, N2, N3 = 40, 41, 42, 43
    def nxt(d, src, sp_reg, sp_lane):
        a("v_readlane_b32 s%d, v%d, %d", S_T0 + 5, sp_reg, sp_lane)
        a("v_mov_b32_dpp v%d, v%d wave_shl:1 row_mask:0xf bank_mask:0xf", d, src)
        a("v_writelane_b32 v%d, s%d, 63", d, S_T0 + 5)
    nxt(N0, DX + 0, DX + 1, 0)
    nxt(N1, DX + 1, DZ + 1, 32)
    nxt(N2, DX + 2, DX + 0, 0)
    a("v_mov_b32_dpp v%d, v%d wave_shl:1 row_mask:0xf bank_mask:0xf", N3, DZ + 0)
    a("v_and_b32 v11, 1, v0")
    a("v_cmp_eq_u32 vcc, 1, v11")
    Q = 44
    for k, (v, n) in enumerate(((DX + 0, N0), (DX + 1, N1))):
        q = Q + 4 * k
        a("v_cndmask_b32 v12, v%d, v%d, vcc", v, n)
        cvt_pk(a, q, n, n); cvt_pk(a, q + 1, n, 12); cvt_pk(a, q + 2, v, v); cvt_pk(a, q + 3, v, v)
        a("ds_write_b128 v%d, %s offset:%d", VA, vr(q, 4), 1024 if k == 0 else 0)
    q = Q + 8
    cvt_pk(a, q, N2, N2); cvt_pk(a, q + 1, DX + 3, DX + 3); cvt_pk(a, q + 2, DX + 3, DX + 2); cvt_pk(a, q + 3, DX + 2, DX + 2)
    a("ds_write_b128 v%d, %s offset:2048", VA, vr(q, 4))
    q = Q + 12
    cvt_pk(a, q, N3, DZ + 3); cvt_pk(a, q + 1, DZ + 2, DZ + 2); cvt_pk(a, q + 2, DZ + 2, DZ + 1); cvt_pk(a, q + 3, DZ + 0, DZ + 0)
    a("s_mov_b32 exec_hi, 0")
    a("ds_write_b128 v%d, %s offset:2560", VA, vr(q, 4))
    a("s_mov_b32 exec_hi, -1")
    a("v_lshrrev_b32 v11, 1, v%d", V_G)
    a("v_lshlrev_b32 v11, 7, v11")
    a("v_lshlrev_b32 v12, 3, v%d", V_I)
    a("v_add_u32 v11, v11, v12")
    a("v_and_b32 v12, 1, v%d", V_G)
    a("v_lshlrev_b32 v12, 2, v12")
    a("v_add_u32 v11, v11, v12")
    a("v_lshlrev_b32 v11, 1, v11")
    a("v_sub_u32 v11, s%d, v11", S_RB)
    a("v_add_u32 v11, %d, v11", 3 * CS + 2 * 2044)
    cvt_pk(a, 12, DY + 3, DY + 2); cvt_pk(a, 13, DY + 1, DY + 0)
    a("ds_write_b64 v11, v[12:13]")
    for i in range(4): a("v_mov_b32 v%d, 0", 60 + i)
    a("v_lshrrev_b32 v11, 1, v0")
    a("v_mul_u32_u24 v11, %d, v11", CS)
    a("v_and_b32 v16, 1, v0")
    a("v_lshlrev_b32 v16, 4, v16")
    a("v_add_u32 v11, v11, v16")
    a("v_add_u32 v11, s%d, v11", S_RB)
    a("s_mov_b64 exec, 0xff")
    a("ds_write_b128 v11, v[60:63] offset:4096")
    a("s_mov_b64 exec, -1")
    a("v_lshlrev_b32 v11, 4, v0")
    a("v_add_u32 v11, s%d, v11", S_RB)
    a("s_mov_b64 exec, 0x3fffffff")
    a("ds_write_b128 v11, v[60:63] offset:%d", U_OFF)
    a("s_mov_b64 exec, -1")
    for q in range(4):
        d = 44 + 20 * (q & 1)
        a("ds_read_b128 %s, v11 offset:%d", vr(d, 4), 3 * CS + 1024 * q)
        a("ds_read_b64 %s, v11 offset:%d", vr(d + 4, 2), 3 * CS + 1024 * q + 16)
        a("s_waitcnt lgkmcnt(0)")
        for k in range(4):
            a("v_alignbit_b32 v%d, v%d, v%d, 16", d + 6 + k, d + k + 1, d + k)
        for k in range(4):
            a("v_alignbit_b32 v%d, v%d, v%d, 16", d + 10 + k, d + k + 2, d + k + 1)
        for k in range(4):
            a("v_mov_b32 v%d, v%d", d + 14 + k, d + k + 1)
        a("ds_write_b128 v11, %s offset:%d", vr(d + 6, 4), 2 * CS + 1024 * q)
        a("ds_write_b128 v11, %s offset:%d", vr(d + 10, 4), 0 * CS + 1024 * q)
        a("ds_write_b128 v11, %s offset:%d", vr(d + 14, 4), 1 * CS + 1024 * q)
    stamp(a, 4, "b_expand")
    poll_flags(a, 10, 12, 16)
    stamp(a, 5, "b_upoll")
    a("s_lshl_b32 s%d, s%d, 12", S_T0 + 4, S_CH)
    a("s_add_u32 s%d, s%d, 0x%x", S_T0 + 4, S_T0 + 4, WS_UT)
    a("v_lshlrev_b32 v12, 4, v0")
    for q in range(4):
        a("s_add_u32 m0, s%d, %d", S_RB, U_OFF + 480 + 1024 * q)
        a("buffer_load_dwordx4 v12, s[%d:%d], s%d offen sc1 lds", R_WS, R_WS + 3, S_T0 + 4)
        a("s_add_u32 s%d, s%d, 1024", S_T0 + 4, S_T0 + 4)
    AA0, AA1, BB, SK = 8, 9, 10, 11
    a("v_and_b32 v13, 3, v%d", V_I)
    a("v_mul_u32_u24 v13, %d, v13", CS)
    a("v_lshrrev_b32 v14, 2, v%d", V_I)
    a("v_lshlrev_b32 v14, 3, v14")
    a("v_sub_u32 v13, v13, v14")
    a("v_lshlrev_b32 v14, 4, v%d", V_G)
    a("v_add_u32 v13, v13, v14")
    a("v_add_u32 v13, 24, v13")
    a("v_add_u32 v%d, s%d, v13", AA0, S_RB)
    a("v_add_u32 v%d, 2048, v%d", AA1, AA0)
    a("v_lshlrev_b32 v13, 5, v%d", V_I)
    a("v_add_u32 v13, v13, v14")
    a("v_add_u32 v13, s%d, v13", S_RB)
    a("v_add_u32 v%d, %d, v13", BB, U_OFF)
    a("v_lshlrev_b32 v13, 5, v%d", V_I)
    a("v_lshlrev_b32 v14, 3, v%d", V_G)
    a("v_add_u32 v13, v13, v14")
    a("v_add_u32 v13, s%d, v13", S_RB)
    a("v_add_u32 v%d, %d, v13", SK, U_OFF + 480)
    ACC = 16
    for i in range(32): a("v_mov_b32 v%d, 0", ACC + i)
    FA = [48, 112]
    SKV = 176
    UR = 208
    def frag_reads(c, st):
        out = []
        b = FA[st]
        for k in range(8):
            va = AA1 if k < 4 else AA0
            o = 248 - 64 * (k & 3) - 8 * c
            out.append("ds_read2_b64 %s, v%d offset0:%d offset1:%d" % (vr(b + 4 * k, 4), va, o, o + 1))
            out.append("ds_read_b128 %s, v%d offset:%d" % (vr(b + 32 + 4 * k, 4), BB, 512 * k + 448 - 64 * c))
        return out
    first = frag_reads(0, 0)
    for x in first[0::2]: a(x)
    a("s_waitcnt vmcnt(0)")
    stamp(a, 6, "b_uload")
    for x in first[1::2]: a(x)
    for n in range(8):
        a("ds_read_b64 %s, v%d offset:%d", vr(UR + 2 * n, 2), SK, 512 * n)
    skip = []
    for n in range(8):
        for h in range(2):
            u = UR + 2 * n + h
            d = SKV + 4 * n + 2 * h
            skip.append("v_lshlrev_b32 v%d, 16, v%d" % (d, u))
            skip.append("v_and_b32 v%d, 0xffff0000, v%d" % (d + 1, u))
            skip.append("v_mul_f32 v%d, v%d, v%d" % (d, d, DSK))
            skip.append("v_mul_f32 v%d, v%d, v%d" % (d + 1, d + 1, DSK))
            skip.append("v_cvt_pk_bf16_f32 v%d, v%d, v%d" % (u, d, d + 1))
            skip.append("v_lshlrev_b32 v%d, 16, v%d" % (d, u))
            skip.append("v_and_b32 v%d, 0xffff0000, v%d" % (d + 1, u))
    for c in range(8):
        st = c & 1
        b = FA[st]
        a("s_waitcnt lgkmcnt(0)")
        mm = []
        for aa in range(8):
            for bb in range(8 - aa):
                n = aa + bb
                mm.append("%s %s, %s, %s, %s" % (MF, vr(ACC + 4 * n, 4), vr(b + 4 * aa, 4), vr(b + 32 + 4 * bb, 4), vr(ACC + 4 * n, 4)))
        side = frag_reads(c + 1, st ^ 1) if c < 7 else []
        if c in (1, 2, 3, 4):
            k = (c - 1) * len(skip) // 4
            side = side + skip[k:k + len(skip) // 4]
        for x in weave(mm, side): a(x)
    stamp(a, 7, "b_conv")
    PKD = 48
    for n in range(8):
        p = PKD + 8 * (n >> 1) + 2 * (n & 1)
        for h in range(2):
            y = ACC + 4 * n + 2 * h
            cvt_pk(a, 12, y, y + 1)
            a("v_lshlrev_b32 v13, 16, v12")
            a("v_and_b32 v14, 0xffff0000, v12")
            a("v_add_f32 v13, v13, v%d", SKV + 4 * n + 2 * h)
            a("v_add_f32 v14, v14, v%d", SKV + 4 * n + 2 * h + 1)
            cvt_pk(a, p + h, 13, 14)
        if n & 1:
            q = PKD + 8 * (n >> 1)
            a("v_permlane16_swap_b32 v%d, v%d", q, q + 2)
            a("v_permlane16_swap_b32 v%d, v%d", q + 1, q + 3)
    a("s_lshl_b32 s%d, s%d, 12", S_T0 + 4, S_CH)
    a("s_add_u32 s%d, s%d, 0x%x", S_T0 + 4, S_T0 + 4, WS_YT)
    a("v_lshlrev_b32 v12, 4, v0")
    for p in range(4):
        a("buffer_store_dwordx4 %s, v12, s[%d:%d], s%d offen offset:%d sc1", vr(PKD + 8 * p, 4), R_WS, R_WS + 3, S_T0 + 4, 1024 * p)
    a("s_lshl_b32 s%d, s%d, 2", S_T0 + 4, S_CH)
    a("s_add_u32 s%d, s%d, 0x%x", S_T0 + 4, S_T0 + 4, WS_FY)
    a("v_mov_b32 v17, s%d", S_T0 + 4)
    publish_flag(a, 17, 16)
    stamp(a, 20, "end"); stamp(a, 21, "realend", real=True)
    stamp_dump(a)


def mover_wave(a):
    RIN = S_RB
    ST = 16384
    srd(a, R_X, P_U, 2048 * 1152)
    srd(a, R_R5, P_DBG, 256)
    stamp(a, 0, "real0", real=True); stamp(a, 1, "start")
    S_CG, S_MT = S_C0 + 2, S_C0 + 3
    a("s_lshr_b32 s%d, s%d, 4", S_CG, S_WG)
    a("s_and_b32 s%d, s%d, 15", S_MT, S_WG)
    a("v_lshrrev_b32 v3, 3, v0")
    a("v_mul_u32_u24 v3, 1152, v3")
    a("v_lshrrev_b32 v4, 4, v0")
    a("v_and_b32 v4, 1, v4")
    a("v_lshlrev_b32 v4, 1, v4")
    a("v_and_b32 v5, 7, v0")
    a("v_xor_b32 v4, v4, v5")
    a("v_lshlrev_b32 v4, 4, v4")
    a("v_add_u32 v6, v3, v4")
    a("v_xor_b32 v7, 64, v6")
    a("s_mul_i32 s%d, s%d, %d", S_T0, S_MT, 128 * 1152)
    a("s_lshl_b32 s%d, s%d, 7", S_T0 + 1, S_CG)
    a("s_add_u32 s%d, s%d, s%d", S_T0, S_T0, S_T0 + 1)
    for m in range(16):
        a("s_add_u32 m0, s%d, %d", RIN, m * 1024)
        a("buffer_load_dwordx4 v%d, s[%d:%d], s%d offen lds", 6 + (m & 1), R_X, R_X + 3, S_T0)
        a("s_add_u32 s%d, s%d, %d", S_T0, S_T0, 8 * 1152)
    a("s_barrier")
    a("v_and_b32 v%d, 15, v0", V_I)
    a("v_lshrrev_b32 v%d, 4, v0", V_G)
    a("v_lshrrev_b32 v8, 2, v%d", V_I)
    a("v_and_b32 v9, 3, v%d", V_I)
    a("v_lshlrev_b32 v10, 3, v%d", V_G)
    a("v_add_u32 v10, v10, v8")
    a("v_lshlrev_b32 v10, 7, v10")
    a("v_lshrrev_b32 v11, 1, v8")
    a("v_and_b32 v12, 1, v%d", V_G)
    a("v_lshlrev_b32 v12, 1, v12")
    a("v_or_b32 v11, v11, v12")
    a("v_lshlrev_b32 v11, 5, v11")
    a("v_add_u32 v10, v10, v11")
    a("v_lshlrev_b32 v11, 3, v9")
    a("v_add_u32 v10, v10, v11")
    a("v_add_u32 v10, s%d, v10", RIN)
    a("v_xor_b32 v11, v%d, v%d", V_G, V_I)
    a("v_lshlrev_b32 v11, 4, v11")
    a("v_lshlrev_b32 v12, 8, v%d", V_I)
    a("v_add_u32 v11, v11, v12")
    a("v_add_u32 v11, s%d, v11", RIN)
    a("v_add_u32 v11, %d, v11", ST)
    a("v_xor_b32 v12, v%d, v%d", V_G, V_I)
    a("v_lshlrev_b32 v12, 4, v12")
    a("v_lshlrev_b32 v13, 8, v%d", V_G)
    a("v_add_u32 v12, v12, v13")
    a("v_add_u32 v12, s%d, v12", RIN)
    a("v_add_u32 v12, %d, v12", ST)
    a("v_lshlrev_b32 v13, 12, v%d", V_G)
    a("v_lshlrev_b32 v14, 4, v%d", V_I)
    a("v_add_u32 v13, v13, v14")
    a("s_lshl_b32 s%d, s%d, 18", S_T0, S_CG)
    a("s_lshl_b32 s%d, s%d, 8", S_T0 + 1, S_MT)
    a("s_add_u32 s%d, s%d, s%d", S_T0, S_T0, S_T0 + 1)
    a("s_add_u32 s%d, s%d, 0x%x", S_T0, S_T0, WS_UT)
    a("s_waitcnt vmcnt(0)")
    stamp(a, 2, "m_uload")
    for cb in range(4):
        a("v_xor_b32 v14, %d, v10", 32 * cb)
        R = 32 + 16 * (cb & 1)
        for w in range(4):
            a("ds_read_b64_tr_b16 v[%d:%d], v14 offset:%d", R + 4 * w, R + 4 * w + 1, 4096 * w)
            a("ds_read_b64_tr_b16 v[%d:%d], v14 offset:%d", R + 4 * w + 2, R + 4 * w + 3, 4096 * w + 512)
        for w in range(4):
            a("v_xor_b32 v15, %d, v11", 64 * w)
            if w == 0: a("s_waitcnt lgkmcnt(0)")
            a("ds_write_b128 v15, %s", vr(R + 4 * w, 4))
        O = 64 + 16 * (cb & 1)
        for r in range(4):
            a("v_xor_b32 v15, %d, v12", 64 * r)
            a("ds_read_b128 %s, v15 offset:%d", vr(O + 4 * r, 4), 1024 * r)
        for r in range(4):
            a("s_waitcnt lgkmcnt(%d)", 3 - r)
            a("buffer_store_dwordx4 %s, v13, s[%d:%d], s%d offen sc1", vr(O + 4 * r, 4), R_WS, R_WS + 3, S_T0)
            a("s_add_u32 s%d, s%d, %d", S_T0, S_T0, 4 * 4096)
    a("v_mov_b32 v9, 0")
    a("s_waitcnt vmcnt(0)")
    get_nonce(a, 16, 9, R_R5)
    a("s_lshl_b32 s%d, s%d, 2", S_T0 + 4, S_WG)
    a("s_add_u32 s%d, s%d, 0x%x", S_T0 + 4, S_T0 + 4, WS_FU)
    a("v_mov_b32 v17, s%d", S_T0 + 4)
    publish_flag(a, 17, 16)
    stamp(a, 3, "m_upub")
    a("v_lshlrev_b32 v3, 12, v%d", V_G)
    a("v_lshrrev_b32 v4, 3, v0")
    a("v_and_b32 v4, 1, v4")
    a("v_lshlrev_b32 v4, 9, v4")
    a("v_add_u32 v3, v3, v4")
    a("v_and_b32 v4, 7, v0")
    a("v_xor_b32 v4, v4, v%d", V_G)
    a("v_lshlrev_b32 v4, 4, v4")
    a("v_add_u32 v6, v3, v4")
    a("v_xor_b32 v7, 64, v6")
    a("s_lshl_b32 s%d, s%d, 18", S_T0, S_CG)
    a("s_lshr_b32 s%d, s%d, 2", S_T0 + 1, S_MT)
    a("s_lshl_b32 s%d, s%d, 10", S_T0 + 1, S_T0 + 1)
    a("s_add_u32 s%d, s%d, s%d", S_T0, S_T0, S_T0 + 1)
    a("s_and_b32 s%d, s%d, 3", S_T0 + 1, S_MT)
    a("s_lshl_b32 s%d, s%d, 7", S_T0 + 1, S_T0 + 1)
    a("s_add_u32 s%d, s%d, s%d", S_T0, S_T0, S_T0 + 1)
    a("s_add_u32 s%d, s%d, 0x%x", S_T0 + 6, S_T0, WS_YT)
    a("v_lshrrev_b32 v8, 2, v%d", V_I)
    a("v_and_b32 v9, 3, v%d", V_I)
    a("v_lshlrev_b32 v10, 3, v%d", V_G)
    a("v_add_u32 v10, v10, v8")
    a("v_lshlrev_b32 v10, 8, v10")
    a("v_lshrrev_b32 v11, 1, v9")
    a("v_lshlrev_b32 v11, 7, v11")
    a("v_add_u32 v10, v10, v11")
    a("v_and_b32 v11, 1, v9")
    a("v_lshlrev_b32 v11, 3, v11")
    a("v_add_u32 v10, v10, v11")
    a("v_and_b32 v11, 1, v%d", V_G)
    a("v_lshlrev_b32 v11, 2, v11")
    a("v_or_b32 v11, v11, v8")
    a("v_lshlrev_b32 v11, 4, v11")
    a("v_add_u32 v10, v10, v11")
    a("v_add_u32 v10, s%d, v10", RIN)
    a("v_lshrrev_b32 v11, 1, v%d", V_I)
    a("v_xor_b32 v11, v11, v%d", V_G)
    a("v_lshlrev_b32 v11, 4, v11")
    a("v_lshlrev_b32 v12, 7, v%d", V_I)
    a("v_add_u32 v11, v11, v12")
    a("v_add_u32 v11, s%d, v11", RIN)
    a("v_add_u32 v11, %d, v11", ST)
    a("v_xor_b32 v18, 64, v11")
    a("v_lshrrev_b32 v12, 3, v0")
    a("v_lshrrev_b32 v13, 1, v12")
    a("v_and_b32 v14, 7, v0")
    a("v_xor_b32 v13, v13, v14")
    a("v_lshlrev_b32 v13, 4, v13")
    a("v_lshlrev_b32 v15, 7, v12")
    a("v_add_u32 v13, v13, v15")
    a("v_add_u32 v13, s%d, v13", RIN)
    a("v_add_u32 v13, %d, v13", ST)
    a("v_xor_b32 v19, 64, v13")
    a("v_mul_u32_u24 v12, 2304, v12")
    a("v_lshlrev_b32 v14, 4, v14")
    a("v_add_u32 v12, v12, v14")
    a("s_mul_i32 s%d, s%d, %d", S_T0 + 7, S_MT, 128 * 2304)
    a("s_lshl_b32 s%d, s%d, 7", S_T0 + 1, S_CG)
    a("s_add_u32 s%d, s%d, s%d", S_T0 + 7, S_T0 + 7, S_T0 + 1)
    a("s_add_u32 s%d, s%d, 1152", S_T0 + 7, S_T0 + 7)
    a("s_lshl_b32 s%d, s%d, 8", S_T0 + 4, S_CG)
    a("s_add_u32 s%d, s%d, 0x%x", S_T0 + 4, S_T0 + 4, WS_FY)
    a("v_lshlrev_b32 v14, 2, v0")
    a("v_add_u32 v14, s%d, v14", S_T0 + 4)
    poll_flags(a, 14, 15, 64)
    stamp(a, 4, "m_ypoll")
    for m in range(16):
        a("s_add_u32 m0, s%d, %d", RIN, m * 1024)
        a("buffer_load_dwordx4 v%d, s[%d:%d], s%d offen sc1 lds", 6 + ((m >> 1) & 1), R_WS, R_WS + 3, S_T0 + 6)
        a("s_add_u32 s%d, s%d, %d", S_T0 + 6, S_T0 + 6, 4 * 4096)
    a("s_waitcnt vmcnt(0)")
    stamp(a, 5, "m_yload")
    for ii in range(8):
        a("v_xor_b32 v14, %d, v10", 16 * ii)
        R = 32 + 8 * (ii & 1)
        sb = 2048 * (ii & 1)
        for hh in range(2):
            a("ds_read_b64_tr_b16 v[%d:%d], v14 offset:%d", R + 4 * hh, R + 4 * hh + 1, 8192 * hh)
            a("ds_read_b64_tr_b16 v[%d:%d], v14 offset:%d", R + 4 * hh + 2, R + 4 * hh + 3, 8192 * hh + 1024)
        a("s_waitcnt lgkmcnt(2)")
        a("ds_write_b128 v11, %s offset:%d", vr(R, 4), sb)
        a("s_waitcnt lgkmcnt(1)")
        a("ds_write_b128 v18, %s offset:%d", vr(R + 4, 4), sb)
        O = 64 + 8 * (ii & 1)
        a("ds_read_b128 %s, v13 offset:%d", vr(O, 4), sb)
        a("ds_read_b128 %s, v19 offset:%d", vr(O + 4, 4), sb + 1024)
        for r in range(2):
            a("s_waitcnt lgkmcnt(%d)", 1 - r)
            a("buffer_store_dwordx4 %s, v12, s[%d:%d], s%d offen", vr(O + 4 * r, 4), R_OUT, R_OUT + 3, S_T0 + 7)
            a("s_add_u32 s%d, s%d, %d", S_T0 + 7, S_T0 + 7, 8 * 2304)
    a("s_waitcnt vmcnt(0)")
    stamp(a, 20, "end"); stamp(a, 21, "realend", real=True)
    stamp_dump(a)

def build():
    a = Asm()
    a("s_cmp_ge_u32 s2, 256")
    a("s_cbranch_scc1 L_end")
    a("s_load_dwordx16 s[36:51], s[0:1], 0")
    a("s_load_dwordx8 s[52:59], s[0:1], 64")
    a("s_load_dwordx4 s[60:63], s[0:1], 96")
    a("v_lshrrev_b32 v1, 6, v0")
    a("v_and_b32 v0, 63, v0")
    a("s_and_b32 s6, s2, 7")
    a("v_readfirstlane_b32 s%d, v1", S_W)
    a("s_lshr_b32 s7, s2, 3")
    a("s_lshr_b32 s%d, s6, 1", S_TT)
    a("s_lshl_b32 s%d, s%d, 2", S_TT, S_TT)
    a("s_and_b32 s%d, s7, 3", S_T0)
    a("s_add_u32 s%d, s%d, s%d", S_TT, S_TT, S_T0)
    a("s_and_b32 s%d, s6, 1", S_HP)
    a("s_lshl_b32 s%d, s%d, 3", S_HP, S_HP)
    a("s_lshr_b32 s%d, s7, 2", S_T0)
    a("s_add_u32 s%d, s%d, s%d", S_HP, S_HP, S_T0)
    a("s_mov_b32 s%d, 0x40000", S_SPIN)
    a("s_mov_b32 s%d, 0x05040100", S_C0 + 5)
    a("s_mov_b32 s%d, 0x07060302", S_C0 + 6)
    a("s_waitcnt lgkmcnt(0)")
    srd(a, R_WS, P_WS, WS_SIZE)
    srd(a, R_OUT, P_OUT, 2048 * 2304)
    a("s_cmp_eq_u32 s%d, 7", S_W)
    a("s_cbranch_scc1 L_loader")
    a("s_cmp_ge_u32 s%d, 4", S_W)
    a("s_cbranch_scc1 L_bteam")
    if OPT["A"]: a_wave(a)
    else: a("s_barrier")
    a("s_endpgm")
    a("L_loader:")
    if OPT["A"]: loader_wave(a)
    else:
        srd(a, R_R5, P_DBG, 256)
        publish_nonce(a)
        a("s_barrier")
    a("s_endpgm")
    a("L_bteam:")
    a("s_sub_u32 s%d, s%d, 4", S_T0, S_W)
    a("s_mul_i32 s%d, s%d, %d", S_RB, S_T0, B_REGION)
    a("s_add_u32 s%d, s%d, %d", S_RB, S_RB, L_B)
    a("s_lshl_b32 s%d, s%d, 1", S_CH, S_WG)
    a("s_add_u32 s%d, s%d, s%d", S_CH, S_CH, S_T0)
    if not OPT["B"]:
        a("s_barrier"); a("s_endpgm")
    a("s_cmp_lt_u32 s%d, 6", S_W)
    a("s_cbranch_scc1 L_channel")
    a("s_cmp_lt_u32 s%d, 144", S_WG)
    a("s_cbranch_scc1 L_mover")
    a("s_add_u32 s%d, s%d, %d", S_CH, S_WG, 512 - 192)
    a("s_cmp_ge_u32 s%d, 192", S_WG)
    a("s_cbranch_scc1 L_channel")
    a("s_barrier")
    a("s_endpgm")
    a("L_channel:")
    channel_wave(a)
    a("s_endpgm")
    a("L_mover:")
    mover_wave(a)
    a("L_end:")
    a("s_endpgm")
    body = pad(a.lines)
    k = NAME + "_kernel"
    hdr = open("cdna_kernels/%s.s.ref" % NAME).read().split("; Override launch geometry")[0]
    s = hdr
    s += "; @launch grid=(256,1,1) block=(512,1,1) lds=%d\n" % LDS_TOTAL
    s += '.amdgcn_target "amdgcn-amd-amdhsa--gfx950"\n.text\n'
    s += ".globl %s\n.p2align 8\n.type %s,@function\n%s:\n" % (k, k, k)
    s += "\n".join(body) + "\n"
    s += '.section .rodata,"a"\n.p2align 6\n.amdhsa_kernel %s\n' % k
    s += "  .amdhsa_next_free_vgpr 256\n  .amdhsa_next_free_sgpr 102\n  .amdhsa_accum_offset 256\n"
    s += "  .amdhsa_group_segment_fixed_size 0\n  .amdhsa_kernarg_size 112\n  .amdhsa_user_sgpr_count 2\n"
    s += "  .amdhsa_user_sgpr_kernarg_segment_ptr 1\n  .amdhsa_system_sgpr_workgroup_id_x 1\n.end_amdhsa_kernel\n"
    return s

if __name__ == "__main__":
    out = sys.argv[1]
    open(out, "w").write(build())
    print("wrote", out)
```
